```python
import torch

def _softmax(x, axis=-1):
    return torch.softmax(x, dim=axis)
def _gelu(x):
    return torch.nn.functional.gelu(x, approximate="tanh")
def _silu(x):
    return torch.nn.functional.silu(x)
def _sigmoid(x):
    return torch.sigmoid(x)
def _layernorm(x, axis=-1, eps=1e-5):
    m = x.mean(dim=axis, keepdim=True)
    v = x.var(dim=axis, keepdim=True, unbiased=False)
    return (x - m) / torch.sqrt(v + eps)
def _scatter_add(tgt, idx, src, axis=0):
    return tgt.clone().index_add_(axis, idx, src)
def _segment_sum(src, seg, n):
    out = torch.zeros((n,) + src.shape[1:], dtype=src.dtype)
    return out.index_add_(0, seg, src)
def _pad(x, pw):
    flat = tuple(v for pair in reversed(pw) for v in pair)
    return torch.nn.functional.pad(x, flat)

kernel_name = 'concat_heads__compressed_kv_cla__mha_block_cached__decode'

def setup_inputs():

    _w = (lambda a: (lambda t: t.to(torch.bfloat16) if t.is_floating_point() else t)(torch.as_tensor(a)))
    def _A_setup():
        B, H, Sq, Sk, D, M = 1, 32, 1, 8192, 128, 512
        Dc = 4 * D
        return {
            "x": _w((lambda *s: torch.randn(*s, dtype=torch.bfloat16) * 3.2)(B, Sq, M)),
            "c_kv": _w((lambda *s: torch.randn(*s, dtype=torch.bfloat16) * 0.1)(B, Sk, Dc)),
            "w_q": _w((lambda *s: torch.randn(*s, dtype=torch.bfloat16) * 6.4)(M, H, D) * (M ** -0.5)),
            "w_uk": _w((lambda *s: torch.randn(*s, dtype=torch.bfloat16) * 6.4)(Dc, H, D) * (Dc ** -0.5)),
            "w_uv": _w((lambda *s: torch.randn(*s, dtype=torch.bfloat16) * 0.1)(Dc, H, D) * (Dc ** -0.5)),
            "w_o": _w((lambda *s: torch.randn(*s, dtype=torch.bfloat16) * 0.1)(H, D, M) * ((H * D) ** -0.5)),
        }
    _A_in = _A_setup()

    def _B_setup():
        B, Sq, D = 1, 1, 512
        H, Sk, Dh = 32, 8192, 128
        return {
            "x": _w((lambda *s: torch.randn(*s, dtype=torch.bfloat16) * 1.6)(B, Sq, D)),
            "k_cache": _w((lambda *s: torch.randn(*s, dtype=torch.bfloat16) * 1.6)(B, H, Sk, Dh)),
            "v_cache": _w((lambda *s: torch.randn(*s, dtype=torch.bfloat16) * 0.05)(B, H, Sk, Dh)),
            "wq": _w((lambda *s: torch.randn(*s, dtype=torch.bfloat16) * 1.6)(D, H * Dh) * (D ** -0.5)),
            "wo": _w((lambda *s: torch.randn(*s, dtype=torch.bfloat16) * 0.05)(H * Dh, D) * ((H * Dh) ** -0.5)),
        }
    _B_in = _B_setup()

    return {
        "A_x": _A_in["x"],
        "A_c_kv": _A_in["c_kv"],
        "A_w_q": _A_in["w_q"],
        "A_w_uk": _A_in["w_uk"],
        "A_w_uv": _A_in["w_uv"],
        "A_w_o": _A_in["w_o"],
        "B_x": _B_in["x"],
        "B_k_cache": _B_in["k_cache"],
        "B_v_cache": _B_in["v_cache"],
        "B_wq": _B_in["wq"],
        "B_wo": _B_in["wo"],
    }

def reference(A_x, A_c_kv, A_w_q, A_w_uk, A_w_uv, A_w_o, B_x, B_k_cache, B_v_cache, B_wq, B_wo):
    def _A_ref(x, c_kv, w_q, w_uk, w_uv, w_o):
        B, Sq, M = x.shape[0], x.shape[1], x.shape[2]
        Sk = c_kv.shape[1]
        H, D = w_q.shape[1], w_q.shape[2]
        q = torch.einsum("bqm,mhd->bhqd", x, w_q)
        k = torch.einsum("bkc,chd->bhkd", c_kv, w_uk)
        v = torch.einsum("bkc,chd->bhkd", c_kv, w_uv)
        scores = torch.einsum("bhqd,bhkd->bhqk", q, k) * (D ** -0.5)
        off = Sk - Sq
        qi = torch.arange(Sq)[:, None]
        kj = torch.arange(Sk)[None, :]
        cmask = kj <= (qi + off)
        scores = torch.where(cmask[None, None], scores, -1e9)
        p = _softmax(scores, axis=-1)
        ctx = torch.einsum("bhqk,bhkd->bhqd", p, v)
        return torch.einsum("bhqd,hdm->bqm", ctx, w_o)

    def _B_ref(x, k_cache, v_cache, wq, wo):
        B, Sq, D = x.shape
        H, Dh = 32, 128
        q = (lambda x, *d: x.permute(*d))((x @ wq).reshape(B, Sq, H, Dh), 0, 2, 1, 3)
        scores = torch.einsum("bhqd,bhkd->bhqk", q, k_cache) * (Dh ** -0.5)
        p = _softmax(scores, axis=-1)
        o = torch.einsum("bhqk,bhkd->bhqd", p, v_cache)
        return (lambda x, *d: x.permute(*d))(o, 0, 2, 1, 3).reshape(B, Sq, H * Dh) @ wo

    a = _A_ref(A_x, A_c_kv, A_w_q, A_w_uk, A_w_uv, A_w_o)
    b = _B_ref(B_x, B_k_cache, B_v_cache, B_wq, B_wo)
    return torch.concatenate([a, b], axis=-1)
```

```python
import re

def regs_of(op):
    op = op.strip().lstrip('-')
    m = re.fullmatch(r'abs\((.*)\)', op)
    if m: op = m.group(1)
    m = re.fullmatch(r'([vsa])(\d+)', op)
    if m: return {(m.group(1), int(m.group(2)))}
    m = re.fullmatch(r'([vsa])\[(\d+):(\d+)\]', op)
    if m: return {(m.group(1), i) for i in range(int(m.group(2)), int(m.group(3))+1)}
    if op in ('vcc', 'vcc_lo', 'vcc_hi'): return {('vcc', 0)}
    if op in ('exec', 'exec_lo', 'exec_hi'): return {('exec', 0)}
    if op == 'm0': return {('m0', 0)}
    return set()

TRANS = ('v_exp_f32', 'v_log_f32', 'v_rcp_f32', 'v_rsq_f32', 'v_sqrt_f32', 'v_sin_f32', 'v_cos_f32')

class Ins:
    def __init__(self, text):
        self.text = text
        t = text.split(';')[0].strip()
        self.label = t.endswith(':')
        self.directive = t.startswith('.') or t == ''
        self.mn = ''
        self.w = set(); self.r = set()
        self.kind = 'none'
        if self.label or self.directive: return
        parts = t.split(None, 1)
        mn = self.mn = parts[0]
        rest = parts[1] if len(parts) > 1 else ''
        ops = [o.strip() for o in re.split(r',(?![^\[]*\])', rest)] if rest else []
        if ops:
            last = ops[-1].split()
            self.mods = ' '.join(last[1:]); ops[-1] = last[0] if last else ''
        else: self.mods = ''
        self.ops = ops
        R = [regs_of(o) for o in ops]
        U = lambda xs: set().union(*xs) if xs else set()
        self.dpp = ('_dpp' in mn)
        self.trans = any(mn.startswith(x) for x in TRANS)
        if mn.startswith('v_mfma'):
            self.kind = 'mfma'; self.w = R[0]; self.a = R[1]; self.b = R[2]; self.c = R[3]; self.r = U(R[1:])
            self.passes = 8 if '32x32' in mn else 4
        elif mn.startswith('v_permlane'):
            self.kind = 'valu'; self.w = U(R); self.r = U(R); self.perm = True
        elif mn.startswith('v_readfirstlane') or mn.startswith('v_readlane'):
            self.kind = 'valu'; self.w = R[0]; self.r = U(R[1:]); self.rdlane = True
        elif mn.startswith('v_cmp'):
            self.kind = 'valu'; self.w = R[0]; self.r = U(R[1:])
            if mn.startswith('v_cmpx'): self.w |= {('exec', 0)}
        elif mn.startswith('v_add_co') or mn.startswith('v_addc_co') or mn.startswith('v_sub_co'):
            self.kind = 'valu'; self.w = R[0] | R[1]; self.r = U(R[2:])
        elif mn.startswith('v_'):
            self.kind = 'valu'; self.w = R[0] if R else set(); self.r = U(R[1:])
            if mn.startswith(('v_fmac', 'v_dot2c', 'v_pk_fmac', 'v_writelane')) or self.dpp: self.r |= R[0]
            if mn.startswith('v_cndmask') and len(ops) == 3: self.r |= {('vcc', 0)}
        elif mn.startswith(('buffer_load', 'global_load')):
            self.kind = 'vmem'
            if 'lds' in self.mods.split() or '_lds_' in mn: self.r = U(R) | {('m0', 0)}
            else: self.w = R[0]; self.r = U(R[1:])
        elif mn.startswith(('buffer_store', 'global_store')):
            self.kind = 'vmem'; self.r = U(R)
            self.wide = mn.endswith(('x3', 'x4'))
            self.data = R[0] if mn.startswith('buffer') else R[1]
        elif mn.startswith(('buffer_atomic', 'global_atomic')):
            self.kind = 'vmem'; self.r = U(R)
            if 'sc0' in self.mods.split(): self.w = R[0]
        elif mn.startswith(('buffer_', )):
            self.kind = 'vmem'
        elif mn.startswith('ds_read') or mn.startswith('ds_bpermute') or mn.startswith('ds_swizzle'):
            self.kind = 'ds'; self.w = R[0]; self.r = U(R[1:])
        elif mn.startswith('ds_'):
            self.kind = 'ds'; self.r = U(R)
        elif mn.startswith('s_'):
            self.kind = 'salu'
            if mn.startswith(('s_cmp', 's_cbranch', 's_branch', 's_waitcnt', 's_barrier', 's_nop', 's_endpgm', 's_sleep', 's_setprio', 's_bitcmp')):
                self.r = U(R)
            else:
                self.w = R[0] if R else set(); self.r = U(R[1:])
                if 'saveexec' in mn: self.w |= {('exec', 0)}
        else:
            raise ValueError('unknown instruction: ' + text)
    def states(self):
        if self.label or self.directive: return 0
        if self.mn == 's_nop': return int(self.ops[0], 0) + 1
        return 1

def need(p, c):
    n = 0
    isv = lambda s: {x for x in s if x[0] in 'va' and x[0] != 'vcc'}
    iss = lambda s: {x for x in s if x[0] in ('s', 'vcc')}
    if p.kind == 'valu':
        pw = isv(p.w); ps = iss(p.w)
        if c.kind == 'mfma' and pw & c.r: n = max(n, 2)
        if c.kind == 'valu':
            if c.dpp and pw & c.r: n = max(n, 2)
            if getattr(c, 'perm', False) and pw & c.r: n = max(n, 2)
            if getattr(c, 'rdlane', False) and pw & c.r: n = max(n, 1)
            if p.trans and pw & c.r: n = max(n, 1)
            if ps & c.r: n = max(n, 4 if getattr(c, 'rdlane', False) or c.mn.startswith('v_writelane') else 2)
        if c.kind == 'vmem' and ps & c.r: n = max(n, 5)
        if c.kind == 'salu' and ps & c.r: n = max(n, 1)
        if ('exec', 0) in p.w and c.kind in ('valu', 'mfma'): n = max(n, 5)
    if p.kind == 'mfma':
        big = p.passes == 8
        if c.kind == 'mfma':
            if p.w & (c.a | c.b): n = max(n, 12 if big else 8)
            if p.w & c.c and not (p.w == c.c and p.passes == c.passes): n = max(n, 10 if big else 6)
            if p.w & c.w and not (p.w == c.c): n = max(n, 10 if big else 6)
        elif c.kind in ('valu', 'vmem', 'ds'):
            if p.w & (c.r | c.w): n = max(n, 12 if big else 8)
            if c.kind == 'valu' and p.c & c.w: n = max(n, 7 if big else 3)
    if p.kind == 'vmem' and getattr(p, 'wide', False):
        if p.data & c.w: n = max(n, 2)
    if p.kind == 'salu' and ('m0', 0) in p.w and ('m0', 0) in c.r: n = max(n, 1)
    return n

class Asm:
    def __init__(self): self.L = []
    def __call__(self, *lines):
        for t in lines:
            for u in t.split('\n'):
                u = u.strip()
                if u: self.L.append(u)
    def fix(self):
        out = []; hist = []
        nn = 0
        for t in self.L:
            if t.startswith(';'):
                out.append(t); continue
            c = Ins(t)
            if c.label or c.directive:
                out.append(t); continue
            d = 0; pad = 0
            for p in reversed(hist):
                k = need(p, c)
                if k > d: pad = max(pad, k - d)
                d += p.states()
                if d >= 13: break
            if pad:
                s = f's_nop {pad-1}'
                out.append(s); hist.append(Ins(s)); nn += 1
            out.append(t); hist.append(c)
            if c.mn in ('s_branch', 's_endpgm'): hist = []
        return out, nn
```

```python
import struct, sys, math
from asmlib import Asm
NAME = "concat_heads__compressed_kv_cla__mha_block_cached__decode"
f2u = lambda x: struct.unpack('<I', struct.pack('<f', x))[0]

HEADER = """; Kernarg layout for this problem (112 bytes, ptrs only, base s[0:1]):
"""

EPOCH = 0x0
QMSG = 0x10000
OMSG = 0x90000
CMSG = 0xD0000
QABS = 0xD8000
MLB  = 0xE0000
PART = 0x100000
YMSG = 0x200000
WSSZ = 0x240000
TSOFF = 0x0F000000
RS = 1056
LB0 = 0; LB1 = 64*RS; LP = 128*RS
LM = LP + 4096
LQB = LM; LQA = LM + 256; LOTB = LM + 512; LOTA = LM + 768
LQROW = LM + 1024; LMX = LM + 2048; LLS = LM + 3072; LCW = LM + 4096
LCR = LM + 5120
LOB = LM + 9216
LDS_TOTAL = 163840
assert LOB + 4096 <= LDS_TOTAL
P_AX, P_CKV, P_AWQ, P_WUK, P_WUV, P_AWO, P_BX, P_K, P_V, P_BWQ, P_BWO, P_OUT, P_DBG, P_WS = range(4, 32, 2)
sW, sH, sJ, sTAG, sAB = 3, 32, 33, 34, 35
R0, R1, RWS, R3, R4 = 36, 40, 44, 48, 52
sT0, sT1, sT2, sT3 = 56, 57, 58, 59
sC, sOFF, sSTR, sSPIN = 60, 61, 62, 63
sM0 = 64
sTS = 70
NTS = 16
SPINMAX = 200000

def v(a, n=1): return f"v{a}" if n == 1 else f"v[{a}:{a+n-1}]"
def s(a, n=1): return f"s{a}" if n == 1 else f"s[{a}:{a+n-1}]"

def gen(T=6, NPRE=5, CU=1, diag=False, late_wo=True, npre_ckv=8, nt="nt", pattern=0, skipA=False):
    A = Asm()
    NS = 6
    nts = [0]
    def stamp(k, mode=None):
        if diag and (mode is None or mode == diag):
            A(f"s_memrealtime {s(sTS+2*k,2)}", "s_waitcnt lgkmcnt(0)")
    def srd(r, p, size):
        A(f"s_mov_b32 {s(r)}, {s(p)}", f"s_mov_b32 {s(r+1)}, {s(p+1)}", f"s_mov_b32 {s(r+2)}, {hex(size)}", f"s_mov_b32 {s(r+3)}, 0x20000")
    def srd_sel(r, pa, pb, size):
        A(f"s_cselect_b32 {s(r)}, {s(pa)}, {s(pb)}", f"s_cselect_b32 {s(r+1)}, {s(pa+1)}, {s(pb+1)}",
          f"s_mov_b32 {s(r+2)}, {hex(size)}", f"s_mov_b32 {s(r+3)}, 0x20000")
    SEL = 1
    def selectors(t0, t1, t2):
        A(f"v_and_b32 {v(t0)}, 1, v0", f"v_cmp_eq_u32 vcc, 1, {v(t0)}")
        for p in range(2):
            lo = 0x0C0C0000 | ((2*p+1) << 8) | (2*p); hi = ((2*p+1) << 24) | ((2*p) << 16) | 0x0C0C
            A(f"v_mov_b32 {v(t1+p)}, {hex(lo)}", f"v_mov_b32 {v(SEL)}, {hex(hi)}", f"v_cndmask_b32 {v(t1+p)}, {v(t1+p)}, {v(SEL)}, vcc")
        A(f"v_bfe_u32 {v(t0)}, v0, 1, 2")
        for r in range(4):
            A(f"v_cmp_eq_u32 vcc, {r}, {v(t0)}")
            for p in range(2):
                A(f"v_mov_b32 {v(SEL+2*r+p)}, 0x0c0c0c0c", f"v_cndmask_b32 {v(SEL+2*r+p)}, {v(SEL+2*r+p)}, {v(t1+p)}, vcc")
    def masked(dst, src, p):
        for r in range(4): A(f"v_perm_b32 {v(dst+r)}, {v(src)}, {v(src)}, {v(SEL+2*r+p)}")
    def mfma(d, a, b, c):
        A(f"v_mfma_f32_16x16x32_bf16 {v(d,4)}, {v(a,4)}, {v(b,4)}, {c if isinstance(c,str) else v(c,4)}")
    def gemv(acc, X, W, n, tmp, waits=None):
        for t in range(n):
            m = tmp + 4*(t & 1)
            masked(m, X + (t >> 1), t & 1)
            if waits: A(f"s_waitcnt vmcnt({waits(t)})")
            mfma(acc, m, W + 4*t, "0" if t == 0 else acc)
    def pair256(dst, acc):
        A(f"v_cmp_gt_u32 vcc, 32, v0", f"v_cndmask_b32 {v(dst)}, {v(acc+2)}, {v(acc)}, vcc", f"v_cndmask_b32 {v(dst+1)}, {v(acc+3)}, {v(acc+1)}, vcc")
    def pair128(dst, acc):
        for r in range(4): A(f"v_mov_b32_dpp {v(acc+r)}, {v(acc+r)} row_ror:8 row_mask:0xc bank_mask:0xf")
        A(f"v_permlane32_swap_b32 {v(acc)}, {v(acc+2)}", f"v_permlane32_swap_b32 {v(acc+1)}, {v(acc+3)}")
        A(f"v_add_f32 {v(dst)}, {v(acc)}, {v(acc+2)}", f"v_add_f32 {v(dst+1)}, {v(acc+1)}, {v(acc+3)}")
    def pairidx(dst, t):
        A(f"v_and_b32 {v(dst)}, 15, v0", f"v_lshlrev_b32 {v(dst)}, 2, {v(dst)}", f"v_bfe_u32 {v(t)}, v0, 4, 1",
          f"v_lshl_add_u32 {v(dst)}, {v(t)}, 1, {v(dst)}", f"v_lshrrev_b32 {v(t)}, 5, v0", f"v_add_u32 {v(dst)}, {v(dst)}, {v(t)}")
    def xrow(op, x, t, rows=(32, 16)):
        for k in rows:
            A(f"v_mov_b32 {v(t)}, {v(x)}", f"v_permlane{k}_swap_b32 {v(x)}, {v(t)}", f"{op} {v(x)}, {v(x)}, {v(t)}")
    lab = [0]
    def poll(loads, tagregs, tmp, code):
        lab[0] += 1; L = f"L_poll{lab[0]}"
        A(f"s_mov_b32 {s(sSPIN)}, 0", f"{L}:")
        for l in loads: A(l)
        A("s_waitcnt vmcnt(0)")
        A(f"v_xor_b32 {v(tmp)}, {s(sTAG)}, {v(tagregs[0])}")
        for t in tagregs[1:]:
            A(f"v_xor_b32 {v(t)}, {s(sTAG)}, {v(t)}", f"v_or_b32 {v(tmp)}, {v(tmp)}, {v(t)}")
        A(f"v_cmp_ne_u32 vcc, 0, {v(tmp)}", f"s_add_u32 {s(sSPIN)}, {s(sSPIN)}, 1", "s_nop 0",
          f"s_cbranch_vccz {L}_ok", f"s_cmp_lt_u32 {s(sSPIN)}, {SPINMAX}", f"s_cbranch_scc1 {L}", f"{L}_ok:")
    def pollcnt(off, n, tmp, zero):
        lab[0] += 1; L = f"L_poll{lab[0]}"
        A(f"s_mov_b32 {s(sSPIN)}, 0", f"{L}:",
          f"buffer_load_dword {v(tmp)}, {v(zero)}, {s(R3,4)}, 0 offen offset:{off} sc1", "s_waitcnt vmcnt(0)",
          f"v_cmp_gt_u32 vcc, {n}, {v(tmp)}", f"s_add_u32 {s(sSPIN)}, {s(sSPIN)}, 1", "s_nop 0",
          f"s_cbranch_vccz {L}_ok", f"s_cmp_lt_u32 {s(sSPIN)}, {SPINMAX}", f"s_cbranch_scc1 {L}", f"{L}_ok:")

    A(f"{NAME}_kernel:")
    if diag:
        for k in range(1, NTS): A(f"s_mov_b64 {s(sTS+2*k,2)}, 0")
        A(f"s_memrealtime {s(sTS,2)}")
    A("s_cmp_ge_u32 s2, 256", "s_cbranch_scc1 L_end",
      "s_load_dwordx16 s[4:19], s[0:1], 0", "s_load_dwordx8 s[20:27], s[0:1], 64", "s_load_dwordx4 s[28:31], s[0:1], 96",
      "v_lshrrev_b32 v1, 6, v0", "v_and_b32 v0, 63, v0", f"v_readfirstlane_b32 {s(sW)}, v1",
      f"s_lshr_b32 {s(sH)}, s2, 3", f"s_add_u32 {s(sJ)}, s2, {s(sH)}", f"s_and_b32 {s(sJ)}, {s(sJ)}, 7",
      f"s_mov_b32 {s(sC)}, {hex(f2u(math.log2(math.e)/math.sqrt(128)))}")
    VK, VD, V16 = 9, 10, 26
    A(f"v_and_b32 v11, 15, v0", f"v_lshrrev_b32 v12, 4, v0", f"v_lshlrev_b32 {v(V16)}, 4, v0")
    A(f"s_sub_u32 {s(sAB)}, {s(sW)}, 4", f"s_cmp_ge_u32 {s(sAB)}, 2", "s_cbranch_scc1 L_nothelper")

    WSL = 128
    XR = 16
    A("s_setprio 3")
    A(f"s_lshl_b32 {s(sT0)}, {s(sJ)}, 6", f"v_lshl_add_u32 v13, v12, 4, {s(sT0)}", f"v_lshlrev_b32 v14, 1, v13",
      f"v_lshlrev_b32 v13, 13, v13", f"s_lshl_b32 {s(sT0)}, {s(sH)}, 8", f"v_lshl_add_u32 v15, v11, 4, {s(sT0)}", f"v_add_u32 v13, v13, v15")
    A(f"s_cmp_eq_u32 {s(sAB)}, 1", "s_waitcnt lgkmcnt(0)")
    srd_sel(R0, P_AWQ, P_BWQ, 4 << 20); srd_sel(R1, P_AX, P_BX, 1024)
    A(f"buffer_load_dwordx4 {v(XR,4)}, v14, {s(R1,4)}, 0 offen", f"buffer_load_dwordx4 {v(XR+4,4)}, v14, {s(R1,4)}, 0 offen offset:16")
    A(f"s_mov_b32 {s(sT0)}, 0")
    for t in range(16):
        A(f"buffer_load_dwordx4 {v(WSL+4*t,4)}, v13, {s(R0,4)}, {s(sT0)} offen {nt}")
        if t < 15: A(f"s_addk_i32 {s(sT0)}, 8192")
    A("s_barrier")
    A(f"s_load_dword {s(sTAG)}, {s(P_WS,2)}, {EPOCH}")
    srd(RWS, P_WS, WSSZ)
    def lane_consts():
        A(f"v_and_b32 {v(VD)}, 3, v0", f"v_lshlrev_b32 {v(VD)}, 4, {v(VD)}", f"v_lshl_add_u32 {v(VD)}, v12, 6, {v(VD)}",
          f"v_bfe_u32 {v(VK)}, v0, 2, 2")
    WU = 64
    def acu_start():
        srd(R1, P_WUK, 4 << 20); srd(R0, P_CKV, 8 << 20)
        A(f"s_lshl_b32 {s(sT0)}, {s(sW)}, 19", f"s_lshl_b32 {s(sT2)}, {s(sH)}, 8", f"s_add_u32 {s(sT0)}, {s(sT0)}, {s(sT2)}",
          f"v_lshl_add_u32 v24, {v(VK)}, 17, {v(VD)}")
        for t in range(16):
            A(f"buffer_load_dwordx4 {v(WU+4*t,4)}, v24, {s(R1,4)}, {s(sT0)} offen {nt}")
            if t < 15: A(f"s_addk_i32 {s(sT0)}, 8192")
        A(f"s_lshl_b32 {s(sOFF)}, {s(sH)}, 18", f"s_lshl_b32 {s(sT0)}, {s(sW)}, 13", f"s_add_u32 {s(sOFF)}, {s(sOFF)}, {s(sT0)}",
          f"s_mul_i32 {s(sSTR)}, {s(sW)}, {8*RS}")
        dma(0)
    def dma(rho):
        A(f"s_add_u32 m0, {s(sSTR)}, {LB1 if rho & 1 else LB0}", f"s_add_u32 {s(sT0)}, {s(sOFF)}, {65536*rho}")
        for x in range(8):
            A(f"buffer_load_dwordx4 {v(V16)}, {s(R0,4)}, {s(sT0)} offen {nt} lds")
            if x < 7: A(f"s_add_u32 m0, m0, {RS}", f"s_addk_i32 {s(sT0)}, 1024")
    selectors(24, 28, 30)
    A("s_waitcnt vmcnt(16)")
    gemv(28, XR, WSL, 16, 40, waits=lambda t: 15 - t)
    A("s_waitcnt lgkmcnt(0)", f"s_add_u32 {s(sTAG)}, {s(sTAG)}, 0x9e3779b9")
    pair256(32, 28)
    A(f"v_mov_b32 v34, 0", f"v_mov_b32 v35, {s(sTAG)}")
    A(f"s_lshl_b32 {s(sT1)}, {s(sAB)}, 5", f"s_add_u32 {s(sT1)}, {s(sT1)}, {s(sH)}", f"s_lshl_b32 {s(sT1)}, {s(sT1)}, 13", f"s_add_u32 {s(sT1)}, {s(sT1)}, {QMSG}",
      f"s_lshl_b32 {s(sT0)}, {s(sJ)}, 10", f"s_add_u32 {s(sT0)}, {s(sT0)}, {s(sT1)}",
      f"buffer_store_dwordx4 v[32:35], {v(V16)}, {s(RWS,4)}, {s(sT0)} offen sc1")
    stamp(1)
    pairidx(27, 24)
    A(f"v_lshlrev_b32 v27, 2, v27")
    MSG = 192
    def gather_q(ldsoff):
        A(f"s_add_u32 {s(sT2)}, {s(sT1)}, 4096")
        loads = [f"buffer_load_dwordx4 {v(MSG+4*jj,4)}, {v(V16)}, {s(RWS,4)}, {s(sT1 if jj < 4 else sT2)} offen offset:{1024*(jj&3)} sc1" for jj in range(8)]
        poll(loads, [MSG+4*jj+3 for jj in range(8)], 24, 1)
        for e in range(2):
            for jj in (0, 2, 4, 6): A(f"v_add_f32 {v(MSG+4*jj+e)}, {v(MSG+4*jj+e)}, {v(MSG+4*jj+4+e)}")
            for jj in (0, 4): A(f"v_add_f32 {v(MSG+4*jj+e)}, {v(MSG+4*jj+e)}, {v(MSG+4*jj+8+e)}")
            A(f"v_add_f32 {v(MSG+e)}, {v(MSG+e)}, {v(MSG+16+e)}")
        A(f"v_cvt_pk_bf16_f32 v24, {v(MSG)}, {v(MSG+1)}", f"v_add_u32 v25, {ldsoff}, v27", f"ds_write_b32 v25, v24", "s_waitcnt lgkmcnt(0)")
    if not skipA: A(f"s_cmp_eq_u32 {s(sJ)}, 7", "s_cbranch_scc1 L_acu_helper")
    A(f"s_cmp_eq_u32 {s(sAB)}, 1", "s_cbranch_scc1 L_helper2")
    gather_q(LQB)
    A("s_branch L_helper2")

    A("L_nothelper:")
    lane_consts()
    A(f"s_cmp_lt_u32 {s(sW)}, 4", "s_cbranch_scc1 L_w03")
    A(f"s_cmp_eq_u32 {s(sW)}, 6", "s_cbranch_scc0 L_nopf")
    A(f"s_getpc_b64 {s(sM0,2)}", "L_pc:", f"s_sub_u32 {s(sM0)}, {s(sM0)}, L_pc-{NAME}_kernel", f"s_subb_u32 {s(sM0+1)}, {s(sM0+1)}, 0")
    A(f"s_and_b32 {s(sT0)}, {s(sH)}, 3", f"s_lshl_b32 {s(sT0)}, {s(sT0)}, 13", f"v_lshlrev_b32 v13, 7, v0", f"v_add_u32 v13, {s(sT0)}, v13",
      f"v_min_u32 v13, L_codeend-{NAME}_kernel-4, v13", f"global_load_dword v63, v13, {s(sM0,2)}")
    A("L_nopf:")
    if not skipA: A(f"s_cmp_eq_u32 {s(sJ)}, 7", "s_cbranch_scc1 L_acu")
    A("s_waitcnt lgkmcnt(0)", "s_branch L_fin")
    A("L_w03:")
    A(f"s_cmp_eq_u32 {s(sJ)}, 7", "s_cbranch_scc1 L_acu")

    NI = 18
    if pattern == 0:
        A(f"s_mul_i32 {s(sT0)}, {s(sW)}, 7", f"s_add_u32 {s(sT0)}, {s(sT0)}, {s(sJ)}", f"s_mov_b32 {s(sSTR)}, {28*4096}")
    elif pattern == 1:
        A(f"s_lshl_b32 {s(sT0)}, {s(sJ)}, 2", f"s_add_u32 {s(sT0)}, {s(sT0)}, {s(sW)}", f"s_mov_b32 {s(sSTR)}, {28*4096}")
    elif pattern == 2:
        A(f"s_mul_i32 {s(sT0)}, {s(sJ)}, 72", f"s_add_u32 {s(sT0)}, {s(sT0)}, {s(sW)}", f"s_mov_b32 {s(sSTR)}, {4*4096}")
    elif pattern == 3:
        A(f"s_lshl_b32 {s(sT0)}, {s(sJ)}, 2", f"s_add_u32 {s(sT0)}, {s(sT0)}, {s(sW)}", f"s_mul_i32 {s(sT0)}, {s(sT0)}, 18", f"s_mov_b32 {s(sSTR)}, {4096}")
    A(f"s_lshl_b32 {s(sT0)}, {s(sT0)}, 12", f"s_lshl_b32 {s(sOFF)}, {s(sH)}, 21", f"s_add_u32 {s(sOFF)}, {s(sOFF)}, {s(sT0)}",
      f"s_sub_u32 {s(sOFF)}, {s(sOFF)}, {s(sSTR)}")
    A(f"v_lshl_add_u32 {v(VK)}, {v(VK)}, 8, {v(VD)}")
    A("s_waitcnt lgkmcnt(0)")
    srd(R0, P_K, 64 << 20); srd(R1, P_V, 64 << 20)
    A("s_barrier")
    Q, ACC, S_, M_, L_ = 12, 28, 32, 36, 37
    TT, UU, AL, MC, PP, PK, MK = 38, 39, 40, 41, 42, 46, 48
    slotK = lambda i: 64 + 32*(i % NS)
    slotV = lambda i: 64 + 32*(i % NS) + 16
    st = dict(issued=0, landed=0)
    total = 8*NI
    def issue(throttle=True):
        idx = st['issued']; it, k = divmod(idx, 8)
        if k == 0: A(f"s_add_u32 {s(sOFF)}, {s(sOFF)}, {s(sSTR)}")
        if throttle and idx - st['landed'] >= T:
            A(f"s_waitcnt vmcnt({T-1})"); st['landed'] = idx - (T-1)
        if k < 4: A(f"buffer_load_dwordx4 {v(slotK(it)+4*k,4)}, {v(VK)}, {s(R0,4)}, {s(sOFF)} offen offset:{1024*k} {nt}")
        else:     A(f"buffer_load_dwordx4 {v(slotV(it)+4*(k-4),4)}, {v(V16)}, {s(R1,4)}, {s(sOFF)} offen offset:{1024*(k-4)} {nt}")
        st['issued'] += 1
    def needs(x):
        if st['landed'] < x:
            A(f"s_waitcnt vmcnt({st['issued']-x})"); st['landed'] = x
    def stream_init(sel=True):
        if sel: selectors(13, 14, 16)
        for r in range(4): A(f"v_mov_b32 {v(ACC+r)}, 0")
        A(f"v_mov_b32 {v(M_)}, 0xff800000", f"v_mov_b32 {v(L_)}, 0", f"v_add_u32 v11, {LQB}, {v(VD)}")
    def read_q():
        A("s_barrier")
        A(f"ds_read_b128 {v(Q,4)}, v11", "s_waitcnt lgkmcnt(0)")
    def rowdot(dst, D, n):
        for b in range(4):
            for r in range(n):
                if b == 0: A(f"v_mov_b32_dpp {v(dst+r)}, {v(D+4*r)} quad_perm:[0,0,0,0] row_mask:0xf bank_mask:0xf")
                else: A(f"v_add_f32_dpp {v(dst+r)}, {v(D+4*r+b)}, {v(dst+r)} quad_perm:[{b},{b},{b},{b}] row_mask:0xf bank_mask:0xf")
    for i in range(T): issue()
    stream_init()
    while st['issued'] < 8*NPRE: issue()
    stamp(1)
    read_q()
    stamp(2)
    done_qk = [-1]; done_pv = [-1]
    def can_issue():
        if st['issued'] >= total: return False
        it, k = divmod(st['issued'], 8)
        return (done_qk[0] if k < 4 else done_pv[0]) >= it - NS
    def advance(x):
        n = 0
        while st['issued'] < min(total, x + T):
            assert can_issue(); issue(); n += 1
        if n == 0:
            for _ in range(CU):
                if can_issue(): issue()
    def consume(i, adv=True):
        if adv: advance(8*i + 4)
        if i == NI - 1:
            assert st['issued'] == total
            st['landed'] = min(st['landed'], 8*i)
            A("L_join:", "s_barrier")
            stamp(3)
        needs(8*i + 4)
        for r in range(4): mfma(MK+4*r, slotK(i)+4*r, Q, "0")
        done_qk[0] = i
        rowdot(S_, MK, 4)
        A(f"v_max3_f32 {v(TT)}, {v(S_)}, {v(S_+1)}, {v(S_+2)}", f"v_max3_f32 {v(TT)}, {v(TT)}, {v(S_+3)}, {v(M_)}")
        xrow("v_max_f32", TT, UU)
        A(f"v_sub_f32 {v(AL)}, {v(M_)}, {v(TT)}", f"v_mul_f32 {v(MC)}, {s(sC)}, {v(TT)}", f"v_mul_f32 {v(AL)}, {s(sC)}, {v(AL)}",
          f"v_mov_b32 {v(M_)}, {v(TT)}", f"v_exp_f32 {v(AL)}, {v(AL)}")
        for r in range(4): A(f"v_fma_f32 {v(PP+r)}, {v(S_+r)}, {s(sC)}, -{v(MC)}")
        for r in range(4): A(f"v_exp_f32 {v(PP+r)}, {v(PP+r)}")
        for r in range(4): A(f"v_mul_f32 {v(ACC+r)}, {v(AL)}, {v(ACC+r)}")
        A(f"v_cvt_pk_bf16_f32 {v(PK)}, {v(PP)}, {v(PP+1)}", f"v_cvt_pk_bf16_f32 {v(PK+1)}, {v(PP+2)}, {v(PP+3)}")
        A(f"v_fma_f32 {v(L_)}, {v(L_)}, {v(AL)}, {v(PP)}", f"v_add_f32 {v(PP+1)}, {v(PP+1)}, {v(PP+2)}",
          f"v_add_f32 {v(L_)}, {v(L_)}, {v(PP+3)}", f"v_add_f32 {v(L_)}, {v(L_)}, {v(PP+1)}")
        for r in range(4): masked(MK+4*r, PK + (r >> 1), r & 1)
        if i == NI - 1:
            xrow("v_add_f32", L_, UU)
            A(f"s_lshl_b32 {s(sT0)}, {s(sW)}, 10", f"s_add_u32 {s(sT0)}, {s(sT0)}, {LOB}", f"v_add_u32 v11, {s(sT0)}, {v(V16)}")
        for r in range(4):
            if adv and (r == 0 or st['issued'] < min(total, 8*i+5+r+T)): advance(8*i + 5 + r)
            needs(8*i + 5 + r)
            mfma(ACC, MK+4*r, slotV(i)+4*r, ACC)
        done_pv[0] = i
    for i in range(NI): consume(i)
    pair256(34, ACC)
    A("ds_write_b128 v11, v[34:37]", "s_waitcnt lgkmcnt(0)", "s_barrier")
    stamp(4)
    A("s_branch L_fin")

    A("L_helper2:")
    stamp(2,1)
    A("s_barrier")
    def wo_loads():
        for t in range(16):
            if t % 4 == 0: A(f"s_mov_b32 {s(sT0)}, {1024*t}")
            A(f"buffer_load_dwordx4 {v(WSL+4*t,4)}, v13, {s(R4,4)}, {s(sT0)} offen offset:{1024*(t&3)} {nt}")
    A(f"v_lshrrev_b32 v14, 3, v0", f"v_lshlrev_b32 v13, 14, v14", f"v_and_b32 v15, 7, v0", f"v_lshl_add_u32 v13, v15, 4, v13",
      f"s_lshl_b32 {s(sT0)}, {s(sH)}, 17", f"s_lshl_b32 {s(sT2)}, {s(sJ)}, 7", f"s_add_u32 {s(sT0)}, {s(sT0)}, {s(sT2)}", f"v_add_u32 v13, {s(sT0)}, v13")
    A(f"s_lshl_b32 {s(sT0)}, {s(sAB)}, 8", f"s_add_u32 {s(sT0)}, {s(sT0)}, {LOTB}", f"v_lshl_add_u32 v14, v14, 5, {s(sT0)}", f"v_add_u32 v15, {s(sT0)}, v27")
    srd(R3, P_OUT, 2048)
    A(f"s_cmp_eq_u32 {s(sAB)}, 1")
    srd_sel(R4, P_AWO, P_BWO, 4 << 20)
    if not late_wo: wo_loads()
    A("s_barrier")
    stamp(3,1)
    if late_wo: wo_loads()
    A("s_barrier")
    stamp(4)
    A(f"s_cmp_eq_u32 {s(sAB)}, 1", "s_cbranch_scc1 L_ha_tail")
    A(f"v_add_u32 v24, {LOB}, {v(V16)}")
    for w in range(4): A(f"ds_read_b128 {v(MSG+4*w,4)}, v24 offset:{1024*w}")
    A("s_waitcnt lgkmcnt(0)")
    A(f"v_max3_f32 v28, {v(MSG+2)}, {v(MSG+6)}, {v(MSG+10)}", f"v_max_f32 v28, v28, {v(MSG+14)}")
    for w in range(4): A(f"v_sub_f32 {v(MSG+4*w+2)}, {v(MSG+4*w+2)}, v28")
    for w in range(4): A(f"v_mul_f32 {v(MSG+4*w+2)}, {s(sC)}, {v(MSG+4*w+2)}")
    for w in range(4): A(f"v_exp_f32 {v(MSG+4*w+2)}, {v(MSG+4*w+2)}")
    A(f"v_mul_f32 v32, {v(MSG)}, {v(MSG+2)}", f"v_mul_f32 v33, {v(MSG+1)}, {v(MSG+2)}", f"v_mul_f32 v29, {v(MSG+3)}, {v(MSG+2)}")
    for w in range(1, 4):
        A(f"v_fmac_f32 v32, {v(MSG+4*w)}, {v(MSG+4*w+2)}", f"v_fmac_f32 v33, {v(MSG+4*w+1)}, {v(MSG+4*w+2)}", f"v_fmac_f32 v29, {v(MSG+4*w+3)}, {v(MSG+4*w+2)}")
    A(f"v_and_b32 v24, 1, v0", f"v_cmp_eq_u32 vcc, 1, v24", f"v_cndmask_b32 v34, v28, v29, vcc", f"v_mov_b32 v35, {s(sTAG)}")
    A(f"s_lshl_b32 {s(sT1)}, {s(sH)}, 13", f"s_add_u32 {s(sT1)}, {s(sT1)}, {OMSG}", f"s_lshl_b32 {s(sT0)}, {s(sJ)}, 10", f"s_add_u32 {s(sT0)}, {s(sT0)}, {s(sT1)}",
      f"buffer_store_dwordx4 v[32:35], {v(V16)}, {s(RWS,4)}, {s(sT0)} offen sc1")
    stamp(5,1)
    A(f"s_add_u32 {s(sT2)}, {s(sT1)}, 4096")
    loads = [f"buffer_load_dwordx4 {v(MSG+4*jj,4)}, {v(V16)}, {s(RWS,4)}, {s(sT1 if jj < 4 else sT2)} offen offset:{1024*(jj&3)} sc1" for jj in range(8)]
    poll(loads, [MSG+4*jj+3 for jj in range(8)], 24, 2)
    stamp(6,1)
    for jj in range(8): A(f"v_mov_b32_dpp {v(MSG+4*jj+3)}, {v(MSG+4*jj+2)} quad_perm:[0,0,2,2] row_mask:0xf bank_mask:0xf")
    for jj in range(8): A(f"v_mov_b32_dpp {v(MSG+4*jj+2)}, {v(MSG+4*jj+2)} quad_perm:[1,1,3,3] row_mask:0xf bank_mask:0xf")
    mj = lambda jj: v(MSG+4*jj+3)
    A(f"v_max3_f32 v28, {mj(0)}, {mj(1)}, {mj(2)}", f"v_max3_f32 v29, {mj(3)}, {mj(4)}, {mj(5)}", f"v_max3_f32 v28, v28, {mj(6)}, {mj(7)}", f"v_max_f32 v28, v28, v29",
      f"v_mul_f32 v28, {s(sC)}, v28")
    for jj in range(8): A(f"v_fma_f32 {mj(jj)}, {mj(jj)}, {s(sC)}, -v28")
    for jj in range(8): A(f"v_exp_f32 {mj(jj)}, {mj(jj)}")
    A(f"v_mul_f32 v29, {v(MSG+2)}, {mj(0)}", f"v_mul_f32 v32, {v(MSG)}, {mj(0)}", f"v_mul_f32 v33, {v(MSG+1)}, {mj(0)}")
    for jj in range(1, 8):
        A(f"v_fmac_f32 v29, {v(MSG+4*jj+2)}, {mj(jj)}", f"v_fmac_f32 v32, {v(MSG+4*jj)}, {mj(jj)}", f"v_fmac_f32 v33, {v(MSG+4*jj+1)}, {mj(jj)}")
    A(f"v_rcp_f32 v29, v29", f"v_mul_f32 v32, v32, v29", f"v_mul_f32 v33, v33, v29")
    A("s_branch L_tail_common")
    A("L_ha_tail:")
    A(f"s_lshl_b32 {s(sT1)}, {s(sH)}, 10", f"s_add_u32 {s(sT1)}, {s(sT1)}, {CMSG}")
    if not skipA:
        poll([f"buffer_load_dwordx4 v[32:35], {v(V16)}, {s(RWS,4)}, {s(sT1)} offen sc1"], [35], 24, 3)
    stamp(6,1)
    A("L_tail_common:")
    A(f"v_cvt_pk_bf16_f32 v24, v32, v33", f"ds_write_b32 v15, v24", "s_waitcnt lgkmcnt(0)",
      f"ds_read_b128 {v(XR,4)}, v14", f"ds_read_b128 {v(XR+4,4)}, v14 offset:16")
    A(f"s_lshl_b32 {s(sT1)}, {s(sAB)}, 3", f"s_add_u32 {s(sT1)}, {s(sT1)}, {s(sJ)}", f"s_lshl_b32 {s(sT1)}, {s(sT1)}, 14", f"s_add_u32 {s(sT1)}, {s(sT1)}, {YMSG}",
      f"s_lshl_b32 {s(sT0)}, {s(sH)}, 9", f"s_add_u32 {s(sT0)}, {s(sT0)}, {s(sT1)}", f"v_lshlrev_b32 v25, 2, v27",
      f"v_and_b32 v36, 31, v0", f"v_lshlrev_b32 v36, 9, v36", f"s_lshl_b32 {s(sT2)}, {s(sH)}, 4", f"s_add_u32 {s(sT1)}, {s(sT1)}, {s(sT2)}")
    A("s_waitcnt vmcnt(0) lgkmcnt(0)")
    gemv(28, XR, WSL, 16, 40)
    pair128(32, 28)
    A(f"v_mov_b32 v34, {s(sTAG)}", f"s_mov_b32 exec_lo, 0x00ff00ff", f"s_mov_b32 exec_hi, 0x00ff00ff",
      f"buffer_store_dwordx3 v[32:34], v25, {s(RWS,4)}, {s(sT0)} offen sc1", "s_mov_b32 exec_lo, -1", "s_mov_b32 exec_hi, 0")
    stamp(7,1)
    poll([f"buffer_load_dwordx3 v[40:42], v36, {s(RWS,4)}, {s(sT1)} offen sc1"], [42], 24, 4)
    stamp(8,1)
    A("s_mov_b64 exec, -1")
    for k in (8, 4, 2, 1):
        for e in range(2): A(f"v_add_f32_dpp {v(40+e)}, {v(40+e)}, {v(40+e)} row_ror:{k} row_mask:0xf bank_mask:0xf")
    xrow("v_add_f32", 40, 24, rows=(16,)); xrow("v_add_f32", 41, 25, rows=(16,))
    A(f"s_xor_b32 {s(sT0)}, {s(sAB)}, 1", f"s_lshl_b32 {s(sT0)}, {s(sT0)}, 10", f"s_lshl_b32 {s(sT1)}, {s(sJ)}, 7", f"s_add_u32 {s(sT0)}, {s(sT0)}, {s(sT1)}",
      f"s_lshl_b32 {s(sT1)}, {s(sH)}, 2", f"s_add_u32 {s(sT0)}, {s(sT0)}, {s(sT1)}",
      f"v_cvt_pk_bf16_f32 v24, v40, v41", f"v_mov_b32 v25, 0", "s_mov_b64 exec, 1",
      f"buffer_store_dword v24, v25, {s(R3,4)}, {s(sT0)} offen")
    A(f"s_or_b32 {s(sT0)}, s2, {s(sAB)}", f"s_cmp_lg_u32 {s(sT0)}, 0", "s_cbranch_scc1 L_noepoch",
      f"v_mov_b32 v24, {s(sTAG)}", f"buffer_store_dword v24, v25, {s(RWS,4)}, 0 offen offset:{EPOCH}", "L_noepoch:", "s_mov_b64 exec, -1")
    stamp(15)
    A("s_branch L_fin")

    def rem_issue():
        srd(R0, P_K, 64 << 20); srd(R1, P_V, 64 << 20)
        A(f"s_mov_b32 {s(sSTR)}, {4*4096}", f"s_add_u32 {s(sT0)}, {s(sW)}, 500", f"s_lshl_b32 {s(sT0)}, {s(sT0)}, 12",
          f"s_lshl_b32 {s(sOFF)}, {s(sH)}, 21", f"s_add_u32 {s(sOFF)}, {s(sOFF)}, {s(sT0)}", f"v_lshl_add_u32 {v(VK)}, {v(VK)}, 8, {v(VD)}")
        st['issued'] = 8*(NI-2); st['landed'] = 8*(NI-2)
        while st['issued'] < total: issue(throttle=False)
    if skipA:
        A("L_acu:", "s_waitcnt lgkmcnt(0)", "s_barrier")
        rem_issue()
        selectors(13, 14, 16)
    else:
        A("L_acu_helper:")
        lane_consts()
        acu_start()
        A(f"s_cmp_eq_u32 {s(sAB)}, 1", "s_cbranch_scc1 L_acu_ha")
        A("s_setprio 0", "s_branch L_acu_b1")
        A("L_acu_ha:")
        gather_q(LQA)
        A("s_branch L_acu_b1")
        A("L_acu:")
        A("s_waitcnt lgkmcnt(0)", "s_barrier")
        acu_start()
        srd(RWS, P_WS, WSSZ)
        selectors(13, 14, 16)
        pairidx(27, 24)
        A(f"v_lshlrev_b32 v27, 2, v27")
        A("L_acu_b1:")
        srd(R3, P_DBG, 256)
        A(f"v_add_u32 v13, {LQA}, {v(VD)}", "v_mov_b32 v28, 0")
        A(f"s_lshl_b32 {s(sT0)}, {s(sW)}, 7", f"s_add_u32 {s(sT0)}, {s(sT0)}, {LQROW}", f"v_lshl_add_u32 v14, v12, 5, {s(sT0)}")
        A("s_barrier")
        stamp(1, 2)
        A(f"ds_read_b128 v[16:19], v13", "s_waitcnt lgkmcnt(0)")
        DD, QR = 128, 30
        for t in range(16):
            A(f"s_waitcnt vmcnt({8 + 15 - t})")
            mfma(DD+4*t, WU+4*t, 16, "0")
        rowdot(QR, DD, 16)
        for t in range(8): A(f"v_cvt_pk_bf16_f32 {v(46+t)}, {v(QR+2*t)}, {v(QR+2*t+1)}")
        A("s_mov_b32 exec_lo, 0x00010001", "s_mov_b32 exec_hi, 0x00010001",
          "ds_write_b128 v14, v[46:49]", "ds_write_b128 v14, v[50:53] offset:16",
          "s_mov_b64 exec, -1", "s_waitcnt lgkmcnt(0)", "s_barrier")
        stamp(2, 2)
        A(f"s_cmp_eq_u32 {s(sW)}, 5", "s_cbranch_scc0 L_acu_rest")
        A(f"v_add_u32 v13, {LQROW}, {v(V16)}", f"ds_read_b128 v[16:19], v13", f"s_lshl_b32 {s(sT0)}, {s(sH)}, 10", f"s_add_u32 {s(sT0)}, {s(sT0)}, {QABS}",
          "s_waitcnt lgkmcnt(0)", f"buffer_store_dwordx4 v[16:19], {v(V16)}, {s(RWS,4)}, {s(sT0)} offen sc1", "s_waitcnt vmcnt(0)",
          "v_mov_b32 v14, 1", "s_mov_b64 exec, 1", f"buffer_atomic_add v14, v28, {s(R3,4)}, 0 offen sc1", "s_mov_b64 exec, -1")
        stamp(3, 2)
        pollcnt(0, 32, 14, 28)
        stamp(5, 2)
        for x in range(32):
            if x % 4 == 0: A(f"s_mov_b32 {s(sT0)}, {QABS + 1024*x}")
            A(f"buffer_load_dwordx4 {v(128+4*x,4)}, {v(V16)}, {s(RWS,4)}, {s(sT0)} offen offset:{1024*(x&3)} sc1")
        A(f"v_add_u32 v13, {LB1}, {v(V16)}")
        for x in range(32):
            A(f"s_waitcnt vmcnt({31-x})", f"ds_write_b128 v13, {v(128+4*x,4)} offset:{RS*x}")
        A("s_setprio 0")
        A("L_acu_rest:")
        srd(R1, P_WUV, 4 << 20)
        A(f"s_lshl_b32 {s(sT0)}, {s(sW)}, 19", f"s_lshl_b32 {s(sT2)}, {s(sH)}, 8", f"s_add_u32 {s(sT0)}, {s(sT0)}, {s(sT2)}",
          f"v_lshlrev_b32 v19, 17, v12", f"v_lshl_add_u32 v19, v11, 4, v19")
        for t in range(16):
            A(f"buffer_load_dwordx4 {v(WU+4*t,4)}, v19, {s(R1,4)}, {s(sT0)} offen {nt}")
            if t < 15: A(f"s_addk_i32 {s(sT0)}, 8192")
        aQK, aTR, aMXw, aMX0, aMX1, aPw, aP0, aP1 = 14, 16, 18, 19, 20, 21, 22, 23
        sKT, sHT = sT1, sT2
        A(f"s_and_b32 {s(sKT)}, {s(sW)}, 3", f"s_lshr_b32 {s(sHT)}, {s(sW)}, 2", f"s_movk_i32 {s(sT3)}, {RS}",
          f"v_mul_lo_u32 v24, v11, {s(sT3)}", f"v_lshl_add_u32 v24, v12, 4, v24",
          f"s_mul_i32 {s(sT0)}, {s(sKT)}, {16*RS}", f"v_add_u32 {v(aQK)}, {s(sT0)}, v24", f"v_add_u32 {v(aQK+1)}, {LB1}, {v(aQK)}",
          f"s_mul_i32 {s(sT0)}, {s(sHT)}, {16*RS}", f"s_add_u32 {s(sT0)}, {s(sT0)}, {LB1}", f"v_add_u32 v13, {s(sT0)}, v24",
          f"v_lshrrev_b32 v24, 2, v0", f"v_mul_lo_u32 v24, v24, {s(sT3)}", f"v_and_b32 v25, 3, v0", f"v_lshl_add_u32 v24, v25, 3, v24",
          f"s_lshl_b32 {s(sT0)}, {s(sW)}, 7", f"v_add_u32 {v(aTR)}, {s(sT0)}, v24", f"v_add_u32 {v(aTR+1)}, {LB1}, {v(aTR)}",
          f"s_lshl_b32 {s(sT0)}, {s(sHT)}, 8", f"v_lshl_add_u32 v24, v11, 4, {s(sT0)}", f"v_add_u32 {v(aMX0)}, {LMX}, v24",
          f"v_xor_b32 v24, 256, v24", f"v_add_u32 {v(aMX1)}, {LMX}, v24",
          f"s_lshl_b32 {s(sT0)}, {s(sKT)}, 2", f"v_add_u32 {v(aMXw)}, {s(sT0)}, {v(aMX0)}",
          f"s_lshl_b32 {s(sT0)}, {s(sHT)}, 10", f"v_add_u32 v24, {s(sT0)}, {v(V16)}", f"v_add_u32 {v(aP0)}, {LP}, v24",
          f"v_xor_b32 v24, 1024, v24", f"v_add_u32 {v(aP1)}, {LP}, v24",
          f"s_lshr_b32 {s(sT0)}, {s(sKT)}, 1", f"s_lshl_b32 {s(sT0)}, {s(sT0)}, 11", f"s_and_b32 {s(sT3)}, {s(sKT)}, 1", f"s_lshl_b32 {s(sT3)}, {s(sT3)}, 3",
          f"s_add_u32 {s(sT0)}, {s(sT0)}, {s(sT3)}", f"v_add_u32 {v(aPw)}, {s(sT0)}, {v(aP0)}")
        A("s_waitcnt lgkmcnt(0)", "s_barrier")
        stamp(6, 2)
        QA, AC, ST = 128, 192, 224
        for ks in range(16): A(f"ds_read_b128 {v(QA+4*ks,4)}, v13 offset:{64*ks}")
        A(f"s_waitcnt vmcnt(16) lgkmcnt(0)", "s_barrier")
        dma(1)
        SS, MM, ALP, LL, PO = 30, 34, 36, 38, 40
        for rho in range(4):
            bq = rho & 1
            if rho > 0:
                A(f"s_waitcnt vmcnt({8 if rho < 3 else 0})", "s_barrier")
            stamp(7 + rho, 2)
            for ks in range(7): A(f"ds_read_b128 {v(ST+4*ks,4)}, {v(aQK+bq)} offset:{64*ks}")
            for ks in range(16):
                if ks + 7 < 16: A(f"ds_read_b128 {v(ST+4*((ks+7)&7),4)}, {v(aQK+bq)} offset:{64*(ks+7)}")
                A(f"s_waitcnt lgkmcnt({min(7, 15-ks)})")
                mfma(SS, ST+4*(ks & 7), QA+4*ks, "0" if ks == 0 else SS)
            A(f"v_max3_f32 v24, {v(SS)}, {v(SS+1)}, {v(SS+2)}", f"v_max_f32 v24, v24, {v(SS+3)}")
            xrow("v_max_f32", 24, 25)
            A("s_mov_b64 exec, 0xffff", f"ds_write_b32 {v(aMXw)}, v24", "s_mov_b64 exec, -1", "s_waitcnt lgkmcnt(0)", "s_barrier")
            A(f"ds_read_b128 v[56:59], {v(aMX0)}", f"ds_read_b128 v[60:63], {v(aMX1)}")
            def tr_read(x):
                Tt, kap = x >> 1, x & 1
                b = ST + 4*x
                A(f"ds_read_b64_tr_b16 {v(b,2)}, {v(aTR+bq)} offset:{32*kap*RS + 32*Tt}", f"ds_read_b64_tr_b16 {v(b+2,2)}, {v(aTR+bq)} offset:{(32*kap+16)*RS + 32*Tt}")
            for x in range(4): tr_read(x)
            A("s_waitcnt lgkmcnt(8)")
            for u in range(2):
                b = 56 + 4*u
                A(f"v_max3_f32 {v(b)}, {v(b)}, {v(b+1)}, {v(b+2)}")
                if rho == 0: A(f"v_max_f32 {v(MM+u)}, {v(b)}, {v(b+3)}")
                else:
                    A(f"v_max3_f32 {v(b)}, {v(b)}, {v(b+3)}, {v(MM+u)}", f"v_sub_f32 {v(ALP+u)}, {v(MM+u)}, {v(b)}", f"v_mov_b32 {v(MM+u)}, {v(b)}",
                      f"v_mul_f32 {v(ALP+u)}, {s(sC)}, {v(ALP+u)}", f"v_exp_f32 {v(ALP+u)}, {v(ALP+u)}")
            A(f"v_mul_f32 v24, {s(sC)}, {v(MM)}")
            for r in range(4): A(f"v_fma_f32 {v(SS+r)}, {v(SS+r)}, {s(sC)}, -v24")
            for r in range(4): A(f"v_exp_f32 {v(SS+r)}, {v(SS+r)}")
            A(f"v_cvt_pk_bf16_f32 v24, {v(SS)}, {v(SS+1)}", f"v_cvt_pk_bf16_f32 v25, {v(SS+2)}, {v(SS+3)}", f"ds_write_b64 {v(aPw)}, v[24:25]")
            for x in range(4, 8): tr_read(x)
            A(f"v_add_f32 {v(SS)}, {v(SS)}, {v(SS+1)}", f"v_add_f32 {v(SS+2)}, {v(SS+2)}, {v(SS+3)}")
            if rho == 0: A(f"v_add_f32 {v(LL)}, {v(SS)}, {v(SS+2)}")
            else:
                A(f"v_fma_f32 {v(LL)}, {v(LL)}, {v(ALP)}, {v(SS)}", f"v_add_f32 {v(LL)}, {v(LL)}, {v(SS+2)}")
                for Tt in range(4):
                    for u in range(2):
                        for r in range(4): A(f"v_mul_f32 {v(AC+8*Tt+4*u+r)}, {v(ALP+u)}, {v(AC+8*Tt+4*u+r)}")
            A("s_waitcnt lgkmcnt(0)", "s_barrier")
            if rho < 2: dma(rho + 2)
            for kap in range(2):
                for u in range(2): A(f"ds_read_b128 {v(PO+8*kap+4*u,4)}, {v(aP0+u)} offset:{2048*kap}")
            for kap in range(2):
                A(f"s_waitcnt lgkmcnt({2 if kap == 0 else 0})")
                for Tt in range(4):
                    for u in range(2):
                        d = AC+8*Tt+4*u
                        mfma(d, ST+4*(2*Tt+kap), PO+8*kap+4*u, "0" if (rho == 0 and kap == 0) else d)
        stamp(11)
        xrow("v_add_f32", LL, 24)
        A(f"s_movk_i32 {s(sT3)}, {RS}", f"v_mul_lo_u32 v24, v11, {s(sT3)}", f"v_lshl_add_u32 v24, v12, 3, v24", f"s_lshl_b32 {s(sT0)}, {s(sW)}, 7", f"v_add_u32 v24, {s(sT0)}, v24",
          f"s_mul_i32 {s(sT0)}, {s(sHT)}, {16*RS}", f"v_add_u32 v14, {s(sT0)}, v24", f"s_sub_u32 {s(sT0)}, {16*RS}, {s(sT0)}", f"v_add_u32 v15, {s(sT0)}, v24")
        A("s_mov_b64 exec, 0xffff", f"ds_write_b32 {v(aMXw)}, {v(LL)} offset:1024", "s_mov_b64 exec, -1")
        for Tt in range(4):
            for u in range(2):
                d = AC+8*Tt+4*u; o = 40 + 4*Tt + 2*u
                A(f"v_cvt_pk_bf16_f32 {v(o)}, {v(d)}, {v(d+1)}", f"v_cvt_pk_bf16_f32 {v(o+1)}, {v(d+2)}, {v(d+3)}", f"ds_write_b64 {v(14+u)}, {v(o,2)} offset:{32*Tt}")
        A(f"s_mul_i32 {s(sT0)}, {s(sW)}, {4*RS}", f"v_add_u32 v13, {s(sT0)}, {v(V16)}",
          f"s_lshl_b32 {s(sT1)}, {s(sH)}, 15", f"s_lshl_b32 {s(sT0)}, {s(sW)}, 12", f"s_add_u32 {s(sT1)}, {s(sT1)}, {s(sT0)}", f"s_add_u32 {s(sT1)}, {s(sT1)}, {PART}")
        A("s_waitcnt lgkmcnt(0)", "s_barrier")
        for x in range(4): A(f"ds_read_b128 {v(40+4*x,4)}, v13 offset:{RS*x}")
        for x in range(4): A(f"s_waitcnt lgkmcnt({3-x})", f"buffer_store_dwordx4 {v(40+4*x,4)}, {v(V16)}, {s(RWS,4)}, {s(sT1)} offen offset:{1024*x} sc1")
        A(f"s_cmp_eq_u32 {s(sW)}, 0", "s_cbranch_scc0 L_acu_noml")
        A(f"v_and_b32 v24, 31, v0", f"v_lshlrev_b32 v25, 4, v24", f"v_add_u32 v25, {LLS}, v25", f"ds_read_b128 v[56:59], v25",
          f"v_and_b32 v22, 16, v0", f"v_cmp_eq_u32 vcc, 0, v22", f"v_cndmask_b32 v22, {v(MM+1)}, {v(MM)}, vcc",
          f"v_lshlrev_b32 v24, 8, v24", f"s_lshl_b32 {s(sT0)}, {s(sH)}, 3", f"s_add_u32 {s(sT0)}, {s(sT0)}, {MLB}", "s_waitcnt lgkmcnt(0)",
          "v_add_f32 v56, v56, v57", "v_add_f32 v58, v58, v59", "v_add_f32 v23, v56, v58",
          "s_mov_b32 exec_hi, 0", f"buffer_store_dwordx2 v[22:23], v24, {s(RWS,4)}, {s(sT0)} offen sc1", "s_mov_b64 exec, -1")
        A("L_acu_noml:")
        A("s_waitcnt vmcnt(0)", "s_barrier")
        stamp(12)
        A(f"s_cmp_eq_u32 {s(sW)}, 5", "s_cbranch_scc0 L_acu_w5")
        A("v_mov_b32 v14, 1", "s_mov_b64 exec, 1", f"buffer_atomic_add v14, v28, {s(R3,4)}, 0 offen offset:128 sc1", "s_mov_b64 exec, -1")
        pollcnt(128, 32, 14, 28)
        A("s_branch L_acu_wait")
        A("L_acu_w5:")
        A(f"s_cmp_eq_u32 {s(sW)}, 4", "s_cbranch_scc0 L_acu_w4")
        A(f"s_lshl_b32 {s(sT1)}, {s(sH)}, 13", f"s_add_u32 {s(sT1)}, {s(sT1)}, {QMSG}")
        gather_q(LQB)
        A("s_branch L_acu_wait")
        A("L_acu_w4:")
        A(f"s_cmp_lt_u32 {s(sW)}, 4", "s_cbranch_scc0 L_acu_wait")
        rem_issue()
        A("L_acu_wait:")
        A(f"v_lshrrev_b32 v14, 3, v0", f"v_lshlrev_b32 v15, 17, v14", f"v_and_b32 v16, 7, v0", f"v_lshl_add_u32 v15, v16, 4, v15",
          f"s_lshl_b32 {s(sT1)}, {s(sH)}, 10", f"s_lshl_b32 {s(sT0)}, {s(sW)}, 7", f"s_add_u32 {s(sT1)}, {s(sT1)}, {s(sT0)}", f"s_add_u32 {s(sT1)}, {s(sT1)}, {PART}",
          f"v_lshlrev_b32 v16, 5, v14", f"s_lshl_b32 {s(sT2)}, {s(sH)}, 8", f"s_add_u32 {s(sT2)}, {s(sT2)}, {MLB}")
        A("s_barrier")
        stamp(13)
        CK = 128
        A(f"buffer_load_dwordx4 v[30:33], v16, {s(RWS,4)}, {s(sT2)} offen sc1", f"buffer_load_dwordx4 v[34:37], v16, {s(RWS,4)}, {s(sT2)} offen offset:16 sc1")
        for t in range(4):
            A(f"buffer_load_dwordx4 {v(CK+4*t,4)}, v15, {s(RWS,4)}, {s(sT1)} offen sc1", f"s_add_u32 {s(sT1)}, {s(sT1)}, 32768")
        A(f"s_lshl_b32 {s(sT0)}, {s(sW)}, 7", f"s_add_u32 {s(sT0)}, {s(sT0)}, {LCW}", f"v_add_u32 v17, {s(sT0)}, v27", f"v_lshl_add_u32 v18, v12, 5, {s(sT0)}")
        A("s_waitcnt vmcnt(4)")
        A("v_max3_f32 v20, v30, v32, v34", "v_max_f32 v20, v20, v36",
          "v_max_f32_dpp v20, v20, v20 row_ror:8 row_mask:0xf bank_mask:0xf")
        xrow("v_max_f32", 20, 21)
        A(f"v_mul_f32 v20, {s(sC)}, v20")
        for t in range(4): A(f"v_fma_f32 {v(30+2*t)}, {v(30+2*t)}, {s(sC)}, -v20")
        for t in range(4): A(f"v_exp_f32 {v(30+2*t)}, {v(30+2*t)}")
        A("v_cvt_pk_bf16_f32 v22, v30, v32", "v_cvt_pk_bf16_f32 v23, v34, v36",
          "v_lshlrev_b32 v30, 16, v22", "v_and_b32 v32, 0xffff0000, v22", "v_lshlrev_b32 v34, 16, v23", "v_and_b32 v36, 0xffff0000, v23",
          "v_mul_f32 v20, v30, v31", "v_fmac_f32 v20, v32, v33", "v_fmac_f32 v20, v34, v35", "v_fmac_f32 v20, v36, v37",
          "v_add_f32_dpp v20, v20, v20 row_ror:8 row_mask:0xf bank_mask:0xf")
        xrow("v_add_f32", 20, 21)
        A("v_rcp_f32 v20, v20")
        gemv(48, 22, CK, 4, 40, waits=lambda t: 3 - t)
        pair128(32, 48)
        A("v_mul_f32 v32, v32, v20", "v_mul_f32 v33, v33, v20", "v_cvt_pk_bf16_f32 v24, v32, v33",
          "s_mov_b32 exec_lo, 0x00ff00ff", "s_mov_b32 exec_hi, 0x00ff00ff", "ds_write_b32 v17, v24", "s_mov_b64 exec, -1", "s_waitcnt lgkmcnt(0)",
          "ds_read_b128 v[32:35], v18", "ds_read_b128 v[36:39], v18 offset:16",
          f"s_lshl_b32 {s(sT0)}, {s(sW)}, 9", f"s_add_u32 {s(sT0)}, {s(sT0)}, {LCR}", f"v_lshl_add_u32 v17, v0, 3, {s(sT0)}",
          "s_waitcnt lgkmcnt(0)")
        gemv(48, 32, WU, 16, 40)
        pair256(30, 48)
        A("ds_write_b64 v17, v[30:31]", "s_waitcnt lgkmcnt(0)", "s_barrier")
        stamp(14)
        A(f"s_cmp_ge_u32 {s(sW)}, 6", "s_cbranch_scc1 L_fin")
        A(f"s_cmp_lt_u32 {s(sW)}, 4", "s_cbranch_scc1 L_acu_stream")
        A("s_setprio 3")
        A(f"s_cmp_eq_u32 {s(sAB)}, 1", "s_cbranch_scc0 L_helper2")
        A(f"v_lshlrev_b32 v17, 3, v0", f"v_add_u32 v17, {LCR}, v17")
        for w in range(8): A(f"ds_read_b64 {v(40+2*w,2)}, v17 offset:{512*w}")
        A(f"v_mov_b32 v35, {s(sTAG)}", f"v_mov_b32 v34, 0", f"s_lshl_b32 {s(sT0)}, {s(sH)}, 10", f"s_add_u32 {s(sT0)}, {s(sT0)}, {CMSG}", "s_waitcnt lgkmcnt(0)")
        for e in range(2):
            for w in (0, 2, 4, 6): A(f"v_add_f32 {v(40+2*w+e)}, {v(40+2*w+e)}, {v(42+2*w+e)}")
            A(f"v_add_f32 {v(40+e)}, {v(40+e)}, {v(44+e)}", f"v_add_f32 {v(48+e)}, {v(48+e)}, {v(52+e)}", f"v_add_f32 {v(32+e)}, {v(40+e)}, {v(48+e)}")
        A(f"buffer_store_dwordx4 v[32:35], {v(V16)}, {s(RWS,4)}, {s(sT0)} offen sc1", "s_nop 1")
        stamp(14, 2)
        A("s_branch L_helper2")
        A("L_acu_stream:")
    stream_init(sel=False)
    read_q()
    st['issued'] = total; st['landed'] = 8*(NI-2)
    consume(NI-2, adv=False)
    A("s_nop 7", "s_branch L_join")

    A("L_fin:")
    if diag:
        A("s_waitcnt lgkmcnt(0)")
        A(f"s_lshl_b32 {s(sT0)}, s2, 3", f"s_add_u32 {s(sT0)}, {s(sT0)}, {s(sW)}", f"s_mul_i32 {s(sT0)}, {s(sT0)}, {8*NTS}",
          f"s_add_u32 {s(sT0)}, {s(sT0)}, {TSOFF}", f"s_add_u32 {s(sM0)}, {s(P_WS)}, {s(sT0)}", f"s_addc_u32 {s(sM0+1)}, {s(P_WS+1)}, 0",
          "v_mov_b32 v2, 0", "s_mov_b64 exec, 1")
        for k in range(NTS):
            A(f"v_mov_b32 v4, {s(sTS+2*k)}", f"v_mov_b32 v5, {s(sTS+2*k+1)}", f"global_store_dwordx2 v2, v[4:5], {s(sM0,2)} offset:{8*k}", "s_nop 1")
    A("L_end:", "s_endpgm", "L_codeend:")
    body, nn = A.fix()
    out = [HEADER.rstrip(), f"; @launch grid=(256,1,1) block=(512,1,1) lds={LDS_TOTAL}"]
    if diag: out.append(f"; tsinfo 2048 {NTS}")
    out += ['.amdgcn_target "amdgcn-amd-amdhsa--gfx950"', ".text", f".globl {NAME}_kernel", ".p2align 8", f".type {NAME}_kernel,@function"]
    out += [("" if l.endswith(":") else "    ") + l for l in body]
    out += ['.section .rodata,"a"', ".p2align 6", f".amdhsa_kernel {NAME}_kernel", "  .amdhsa_next_free_vgpr 256", "  .amdhsa_next_free_sgpr 102",
            "  .amdhsa_accum_offset 256", "  .amdhsa_group_segment_fixed_size 0", "  .amdhsa_kernarg_size 112", "  .amdhsa_user_sgpr_count 2",
            "  .amdhsa_user_sgpr_kernarg_segment_ptr 1", "  .amdhsa_system_sgpr_workgroup_id_x 1", ".end_amdhsa_kernel"]
    return "\n".join(out) + "\n"

if __name__ == "__main__":
    kw = {}
    outf = sys.argv[1]
    for a in sys.argv[2:]:
        k, x = a.split("=")
        try: x = eval(x)
        except Exception: pass
        kw[k] = x
    open(outf, "w").write(gen(**kw))
```

```python
import struct, sys, math
from asmlib import Asm
NAME = "concat_heads__compressed_kv_cla__mha_block_cached__decode"
f2u = lambda x: struct.unpack('<I', struct.pack('<f', x))[0]

HEADER = """; Kernarg layout for this problem (112 bytes, ptrs only, base s[0:1]):
"""
EPOCH = 0x0
FLG1 = 0x1000
QCNT = 0x2000
MLB  = 0x4000
QABS = 0x8000
QMSG = 0x10000
OMSG = 0x90000
YMSG = 0x110000
PART = 0x200000
WSSZ = 0x300000
TSOFF = 0x0F000000
RS = 1056
LB0 = 0; LB1 = 64*RS; LP = 128*RS
LM = LP + 4096
LQB = LM; LQA = LM + 256; LOTB = LM + 512; LOTA = LM + 768
LFL = LM + 1024
LMX = LM + 2048; LLS = LM + 3072; LCW = LM + 4096
LOB = LM + 5120
LDS_TOTAL = 163840
assert LOB + 4096 <= LDS_TOTAL
P_AX, P_CKV, P_AWQ, P_WUK, P_WUV, P_AWO, P_BX, P_K, P_V, P_BWQ, P_BWO, P_OUT, P_DBG, P_WS = range(4, 32, 2)
sW, sH, sJ = 3, 32, 33
sTAG, sTAG2 = 34, 35
R0, R1, RWS, R3, R4 = 36, 40, 44, 48, 52
sT0, sT1, sT2, sT3 = 56, 57, 58, 59
sC, sOFF, sSTR, sSPIN = 60, 61, 62, 63
sM0 = 64
sBASE = 66
sMK = 68
sQP, sNXT, sCUR, sHB, sROT = 68, 70, 71, 72, 73
sAB = 28
sTS = 86
NTS = 16
SPINMAX = 200000
NEGBIG = f2u(-3.0e38)

def v(a, n=1): return f"v{a}" if n == 1 else f"v[{a}:{a+n-1}]"
def s(a, n=1): return f"s{a}" if n == 1 else f"s[{a}:{a+n-1}]"

def gen(T=6, T0=None, NPRE=5, ND0=8, CU=1, KA=0, NX=1, diag=False, late_wo=True, nt="nt", pattern=0, psleep=8, TA=4, TAH=8, ROT=0, PERM=0, noatom=0, nopoll=0, nocomp=0, kplain=0, xsleep=2, abl=0, pf='sc1', nob0=0, nopf=0, xf='', nowq=0, wsbase=0):
    A = Asm()
    T0 = T0 or T
    pf = pf.replace("_", " ")
    def stamp(k, mode=None):
        if diag and (mode is None or mode == diag):
            A(f"s_memrealtime s[84:85]", "s_waitcnt lgkmcnt(0)", f"s_mov_b32 {s(sTS+k)}, s84")
    def srd(r, p, size):
        A(f"s_mov_b32 {s(r)}, {s(p)}", f"s_mov_b32 {s(r+1)}, {s(p+1)}", f"s_mov_b32 {s(r+2)}, {hex(size)}", f"s_mov_b32 {s(r+3)}, 0x20000")
    def srd_sel(r, pa, pb, size):
        A(f"s_cselect_b32 {s(r)}, {s(pa)}, {s(pb)}", f"s_cselect_b32 {s(r+1)}, {s(pa+1)}, {s(pb+1)}",
          f"s_mov_b32 {s(r+2)}, {hex(size)}", f"s_mov_b32 {s(r+3)}, 0x20000")
    SEL = 1
    def selectors(t0, t1):
        A(f"v_and_b32 {v(t0)}, 1, v0", f"v_cmp_eq_u32 vcc, 1, {v(t0)}")
        for p in range(2):
            lo = 0x0C0C0000 | ((2*p+1) << 8) | (2*p); hi = ((2*p+1) << 24) | ((2*p) << 16) | 0x0C0C
            A(f"v_mov_b32 {v(t1+p)}, {hex(lo)}", f"v_mov_b32 {v(SEL)}, {hex(hi)}", f"v_cndmask_b32 {v(t1+p)}, {v(t1+p)}, {v(SEL)}, vcc")
        A(f"v_bfe_u32 {v(t0)}, v0, 1, 2")
        for r in range(4):
            A(f"v_cmp_eq_u32 vcc, {r}, {v(t0)}")
            for p in range(2): A(f"v_mov_b32 {v(SEL+2*r+p)}, 0x0c0c0c0c")
            for p in range(2): A(f"v_cndmask_b32 {v(SEL+2*r+p)}, {v(SEL+2*r+p)}, {v(t1+p)}, vcc")
    def masked(dst, src, p):
        for r in range(4): A(f"v_perm_b32 {v(dst+r)}, {v(src)}, {v(src)}, {v(SEL+2*r+p)}")
    def mfma(d, a, b, c):
        A(f"v_mfma_f32_16x16x32_bf16 {v(d,4)}, {v(a,4)}, {v(b,4)}, {c if isinstance(c,str) else v(c,4)}")
    def gemv(acc, X, W, n, tmp, waits=None):
        masked(tmp, X, 0)
        for t in range(n):
            if t + 1 < n: masked(tmp + 4*((t+1) & 1), X + ((t+1) >> 1), (t+1) & 1)
            if waits: A(f"s_waitcnt vmcnt({waits(t)})")
            mfma(acc, tmp + 4*(t & 1), W + 4*t, "0" if t == 0 else acc)
    def pair256(dst, acc):
        A(f"v_cmp_gt_u32 vcc, 32, v0", f"v_cndmask_b32 {v(dst)}, {v(acc+2)}, {v(acc)}, vcc", f"v_cndmask_b32 {v(dst+1)}, {v(acc+3)}, {v(acc+1)}, vcc")
    def pair128(dst, acc):
        for r in range(4): A(f"v_mov_b32_dpp {v(acc+r)}, {v(acc+r)} row_ror:8 row_mask:0xc bank_mask:0xf")
        A(f"v_permlane32_swap_b32 {v(acc)}, {v(acc+2)}", f"v_permlane32_swap_b32 {v(acc+1)}, {v(acc+3)}")
        A(f"v_add_f32 {v(dst)}, {v(acc)}, {v(acc+2)}", f"v_add_f32 {v(dst+1)}, {v(acc+1)}, {v(acc+3)}")
    def pairidx4(dst, t):
        A(f"v_lshlrev_b32 {v(dst)}, 4, v11", f"v_bfe_u32 {v(t)}, v0, 4, 1",
          f"v_lshl_add_u32 {v(dst)}, {v(t)}, 3, {v(dst)}", f"v_lshrrev_b32 {v(t)}, 5, v0", f"v_lshl_add_u32 {v(dst)}, {v(t)}, 2, {v(dst)}")
    def xrow(op, x, t, rows=(32, 16)):
        for k in rows:
            A(f"v_mov_b32 {v(t)}, {v(x)}", f"v_permlane{k}_swap_b32 {v(x)}, {v(t)}", f"{op} {v(x)}, {v(x)}, {v(t)}")
    def rowdot(dst, D, n):
        for b in range(4):
            for r in range(n):
                if b == 0: A(f"v_mov_b32_dpp {v(dst+r)}, {v(D+4*r)} quad_perm:[0,0,0,0] row_mask:0xf bank_mask:0xf")
                else: A(f"v_add_f32_dpp {v(dst+r)}, {v(D+4*r+b)}, {v(dst+r)} quad_perm:[{b},{b},{b},{b}] row_mask:0xf bank_mask:0xf")
    lab = [0]
    def poll(loads, tagregs, base="-1", sleep=0, tag=sTAG):
        lab[0] += 1; L = f"L_poll{lab[0]}"
        n = len(loads)
        mk = lambda k: s(sMK+2*k, 2)
        A(f"s_mov_b32 {s(sSPIN)}, 0")
        for k in range(n): A(loads[k])
        A(f"{L}:", "s_waitcnt vmcnt(0)")
        for k in range(n):
            t = tagregs[k]
            A(f"v_cmp_ne_u32 {mk(k)}, {s(tag)}, {v(t[0])}")
            for x in t[1:]: A(f"v_cmp_ne_u32 vcc, {s(tag)}, {v(x)}", f"s_or_b64 {mk(k)}, {mk(k)}, vcc")
        if n == 1: A(f"s_cmp_eq_u64 {mk(0)}, 0", f"s_cbranch_scc1 {L}_ok")
        else:
            A(f"s_or_b64 vcc, {mk(0)}, {mk(1)}")
            for k in range(2, n): A(f"s_or_b64 vcc, vcc, {mk(k)}")
            A(f"s_cbranch_scc0 {L}_ok")
        if sleep: A(f"s_sleep {sleep}")
        for k in range(n): A(f"s_mov_b64 exec, {mk(k)}", loads[k])
        A(f"s_mov_b64 exec, {base}", f"s_add_u32 {s(sSPIN)}, {s(sSPIN)}, 1", f"s_cmp_lt_u32 {s(sSPIN)}, {SPINMAX}", f"s_cbranch_scc1 {L}",
          "s_waitcnt vmcnt(0)", f"{L}_ok:")
    VFL = 25
    def flag_wait(off, n, tmp, sleep=0):
        lab[0] += 1; L = f"L_flag{lab[0]}"
        A(f"s_mov_b32 {s(sSPIN)}, 0", f"{L}:", f"ds_read_b32 {v(tmp)}, {v(VFL)} offset:{off}", "s_waitcnt lgkmcnt(0)",
          f"v_cmp_gt_u32 vcc, {n}, {v(tmp)}", f"s_add_u32 {s(sSPIN)}, {s(sSPIN)}, 1", f"s_cbranch_vccz {L}_ok")
        if sleep: A(f"s_sleep {sleep}")
        A(f"s_cmp_lt_u32 {s(sSPIN)}, {SPINMAX*10}", f"s_cbranch_scc1 {L}", f"{L}_ok:")
    def flag_add(off, tmp):
        A(f"v_mov_b32 {v(tmp)}, 1", "s_mov_b64 exec, 1", f"ds_add_u32 {v(VFL)}, {v(tmp)} offset:{off}", "s_mov_b64 exec, -1")
    FQ, FX, FP = 0, 4, 8

    A(f"{NAME}_kernel:")
    if diag:
        A(f"s_memrealtime s[84:85]")
        for k in range(1, NTS): A(f"s_mov_b32 {s(sTS+k)}, 0")
        A("s_waitcnt lgkmcnt(0)", f"s_mov_b32 {s(sTS)}, s84")
    A("s_cmp_ge_u32 s2, 256", "s_cbranch_scc1 L_end",
      "s_load_dwordx16 s[4:19], s[0:1], 0", "s_load_dwordx8 s[20:27], s[0:1], 64", "s_load_dwordx2 s[30:31], s[0:1], 104",
      "v_lshrrev_b32 v1, 6, v0", "v_and_b32 v0, 63, v0", f"v_readfirstlane_b32 {s(sW)}, v1",
      f"s_lshr_b32 {s(sH)}, s2, 3", f"s_add_u32 {s(sJ)}, s2, {s(sH)}", f"s_and_b32 {s(sJ)}, {s(sJ)}, 7",
      f"s_mov_b32 {s(sC)}, {hex(f2u(math.log2(math.e)/math.sqrt(128)))}")
    VK, VD, V16 = 9, 10, 26
    A(f"v_and_b32 v11, 15, v0", f"v_lshrrev_b32 v12, 4, v0", f"v_lshlrev_b32 {v(V16)}, 4, v0", f"v_mov_b32 {v(VFL)}, {LFL}",
      f"v_and_b32 {v(VD)}, 3, v0", f"v_lshlrev_b32 {v(VD)}, 4, {v(VD)}", f"v_lshl_add_u32 {v(VD)}, v12, 6, {v(VD)}", f"v_bfe_u32 {v(VK)}, v0, 2, 2")
    A(f"s_sub_u32 {s(sAB)}, {s(sW)}, 4", f"s_cmp_ge_u32 {s(sAB)}, 2", "s_cbranch_scc1 L_nothelper")

    WSL = 128
    XR = 16
    WU = 64
    MSG = 192
    A("s_setprio 3")
    A(f"v_lshlrev_b32 v13, 17, v12", f"v_lshl_add_u32 v13, v11, 4, v13",
      f"s_lshl_b32 {s(sT0)}, {s(sJ)}, 7", f"v_lshl_add_u32 v14, v12, 5, {s(sT0)}",
      f"s_lshl_b32 {s(sT1)}, {s(sJ)}, 19", f"s_lshl_b32 {s(sT2)}, {s(sH)}, 8", f"s_add_u32 {s(sT1)}, {s(sT1)}, {s(sT2)}")
    def slice_loads(dst, R, voff):
        A(f"s_mov_b32 {s(sT0)}, {s(sT1)}")
        for t in range(16):
            A(f"buffer_load_dwordx4 {v(dst+4*t,4)}, {v(voff)}, {s(R,4)}, {s(sT0)} offen {nt}")
            if t < 15: A(f"s_addk_i32 {s(sT0)}, 8192")
    def x_loads():
        A(f"buffer_load_dwordx4 {v(XR,4)}, v14, {s(R1,4)}, 0 offen {xf}", f"buffer_load_dwordx4 {v(XR+4,4)}, v14, {s(R1,4)}, 0 offen offset:16 {xf}")
    def q_partial(ab, extra):
        selectors(24, 28)
        pairidx4(27, 24)
        A(f"s_waitcnt vmcnt({16+extra})")
        gemv(28, XR, WSL, 16, 40, waits=lambda t: 15 - t + extra)
        A("s_waitcnt lgkmcnt(0)", f"s_add_u32 {s(sTAG)}, {s(sTAG)}, 0x9e3779b9")
        pair256(32, 28)
        A(f"v_mov_b32 v34, 0", f"v_mov_b32 v35, {s(sTAG)}")
        A(f"s_lshl_b32 {s(sT1)}, {s(sH)}, 13", f"s_add_u32 {s(sT1)}, {s(sT1)}, {QMSG + ab*0x40000}",
          f"s_lshl_b32 {s(sT0)}, {s(sJ)}, 10", f"s_add_u32 {s(sT0)}, {s(sT0)}, {s(sT1)}",
          f"buffer_store_dwordx4 v[32:35], {v(V16)}, {s(RWS,4)}, {s(sT0)} offen sc1")
        stamp(1)
    def gather8_loads():
        A(f"s_add_u32 {s(sT2)}, {s(sT1)}, 4096")
        loads = [f"buffer_load_dwordx4 {v(MSG+4*jj,4)}, {v(V16)}, {s(RWS,4)}, {s(sT1 if jj < 4 else sT2)} offen offset:{1024*(jj&3)} {pf}" for jj in range(8)]
        poll(loads, [[MSG+4*jj+3] for jj in range(8)])
    def gather8(d):
        gather8_loads()
        for jj in (0, 2, 4, 6):
            for e in range(2): A(f"v_add_f32 {v(MSG+4*jj+e)}, {v(MSG+4*jj+e)}, {v(MSG+4*jj+4+e)}")
        for jj in (0, 4):
            for e in range(2): A(f"v_add_f32 {v(MSG+4*jj+e)}, {v(MSG+4*jj+e)}, {v(MSG+4*jj+8+e)}")
        for e in range(2): A(f"v_add_f32 {v(d+e)}, {v(MSG+e)}, {v(MSG+16+e)}")
    def gather_q(ldsoff):
        gather8(32)
        A(f"v_cvt_pk_bf16_f32 v24, v32, v33", f"v_add_u32 v15, {ldsoff}, v27", f"ds_write_b32 v15, v24")
    A(f"s_cmp_eq_u32 {s(sAB)}, 0", "s_cbranch_scc1 L_hb")

    def ws_shift():
        if wsbase: A(f"s_add_u32 {s(P_WS)}, {s(P_WS)}, {hex(wsbase)}", f"s_addc_u32 {s(P_WS+1)}, {s(P_WS+1)}, 0")
    A(f"v_lshl_add_u32 v15, {v(VK)}, 17, {v(VD)}", "s_waitcnt lgkmcnt(0)")
    ws_shift()
    if abl >= 2: A("s_barrier", "s_branch L_fin")
    srd(R0, P_AWQ, 4 << 20); srd(R1, P_AX, 1024)
    x_loads(); slice_loads(WSL, R0, 13)
    srd(R0, P_WUK, 4 << 20)
    A(f"s_load_dword {s(sTAG)}, {s(P_WS,2)}, {EPOCH+4}")
    slice_loads(WU, R0, 15)
    A("s_barrier")
    srd(RWS, P_WS, WSSZ)
    q_partial(1, 16)
    gather_q(LQA)
    stamp(2)
    A(f"v_add_u32 v15, {LQA}, {v(VD)}", f"ds_read_b128 v[16:19], v15")
    A(f"v_and_b32 v14, 1, v0", f"v_cmp_eq_u32 {s(sM0,2)}, 1, v14", f"v_lshlrev_b32 v14, 4, v14", f"v_lshl_add_u32 v14, v12, 5, v14",
      f"s_lshl_b32 {s(sT0)}, {s(sH)}, 3", f"s_add_u32 {s(sT0)}, {s(sT0)}, {s(sJ)}", f"s_lshl_b32 {s(sT1)}, {s(sT0)}, 2", f"s_add_u32 {s(sT1)}, {s(sT1)}, {FLG1}",
      f"s_lshl_b32 {s(sT0)}, {s(sT0)}, 7", f"s_add_u32 {s(sT0)}, {s(sT0)}, {QABS}", "s_waitcnt lgkmcnt(0)")
    DD, QR = 128, 30
    for t in range(16): mfma(DD+4*t, WU+4*t, 16, "0")
    rowdot(QR, DD, 16)
    for t in range(8): A(f"v_cvt_pk_bf16_f32 {v(46+t)}, {v(QR+2*t)}, {v(QR+2*t+1)}")
    for t in range(4): A(f"v_cndmask_b32 {v(46+t)}, {v(46+t)}, {v(50+t)}, {s(sM0,2)}")
    A("s_mov_b32 exec_lo, 0x00030003", "s_mov_b32 exec_hi, 0x00030003",
      f"buffer_store_dwordx4 v[46:49], v14, {s(RWS,4)}, {s(sT0)} offen sc1", "s_mov_b64 exec, -1",
      f"v_mov_b32 v15, {s(sTAG)}", "v_mov_b32 v24, 0", "s_mov_b64 exec, 1", "s_waitcnt vmcnt(0)",
      f"buffer_store_dword v15, v24, {s(RWS,4)}, {s(sT1)} offen sc1", "s_mov_b64 exec, -1")
    stamp(3, 2)
    if abl >= 1: A("s_branch L_fin")
    A(f"s_cmp_eq_u32 {s(sJ)}, 7", "s_cbranch_scc1 L_acu_ha")
    A("L_ha2:")
    srd(R0, P_WUV, 4 << 20)
    A(f"v_lshlrev_b32 v13, 17, v12", f"v_lshl_add_u32 v13, v11, 4, v13",
      f"s_lshl_b32 {s(sT1)}, {s(sJ)}, 19", f"s_lshl_b32 {s(sT2)}, {s(sH)}, 8", f"s_add_u32 {s(sT1)}, {s(sT1)}, {s(sT2)}")
    slice_loads(WU, R0, 13)
    A(f"v_lshrrev_b32 v14, 3, v0", f"v_lshlrev_b32 v15, 17, v14", f"v_and_b32 v16, 7, v0", f"v_lshl_add_u32 v15, v16, 4, v15",
      f"s_lshl_b32 {s(sT1)}, {s(sH)}, 10", f"s_lshl_b32 {s(sT0)}, {s(sJ)}, 7", f"s_add_u32 {s(sT1)}, {s(sT1)}, {s(sT0)}", f"s_add_u32 {s(sT1)}, {s(sT1)}, {PART}",
      f"v_lshlrev_b32 v16, 6, v14", f"s_lshl_b32 {s(sT2)}, {s(sH)}, 9", f"s_add_u32 {s(sT2)}, {s(sT2)}, {MLB}")
    if nopoll: flag_wait(FX, 1, 24, sleep=8)
    ML = 48
    poll([f"buffer_load_dwordx3 {v(ML+4*t,3)}, v16, {s(RWS,4)}, {s(sT2)} offen offset:{16*t} sc1" for t in range(4)], [[ML+4*t+2] for t in range(4)], sleep=psleep)
    stamp(13)
    CK = 128
    for t in range(4):
        A(f"buffer_load_dwordx4 {v(CK+4*t,4)}, v15, {s(RWS,4)}, {s(sT1)} offen sc1", f"s_add_u32 {s(sT1)}, {s(sT1)}, 32768")
    A(f"v_add_u32 v17, {LCW}, v27", f"v_lshlrev_b32 v18, 5, v12", f"v_add_u32 v18, {LCW}, v18")
    A(f"v_max3_f32 v20, {v(ML)}, {v(ML+4)}, {v(ML+8)}", f"v_max_f32 v20, v20, {v(ML+12)}",
      "v_max_f32_dpp v20, v20, v20 row_ror:8 row_mask:0xf bank_mask:0xf")
    xrow("v_max_f32", 20, 21)
    A(f"v_mul_f32 v20, {s(sC)}, v20")
    for t in range(4): A(f"v_fma_f32 {v(ML+4*t)}, {v(ML+4*t)}, {s(sC)}, -v20")
    for t in range(4): A(f"v_exp_f32 {v(ML+4*t)}, {v(ML+4*t)}")
    A(f"v_cvt_pk_bf16_f32 v22, {v(ML)}, {v(ML+4)}", f"v_cvt_pk_bf16_f32 v23, {v(ML+8)}, {v(ML+12)}",
      "v_lshlrev_b32 v30, 16, v22", "v_and_b32 v31, 0xffff0000, v22", "v_lshlrev_b32 v32, 16, v23", "v_and_b32 v33, 0xffff0000, v23",
      f"v_mul_f32 v20, v30, {v(ML+1)}", f"v_fmac_f32 v20, v31, {v(ML+5)}", f"v_fmac_f32 v20, v32, {v(ML+9)}", f"v_fmac_f32 v20, v33, {v(ML+13)}",
      "v_add_f32_dpp v20, v20, v20 row_ror:8 row_mask:0xf bank_mask:0xf")
    xrow("v_add_f32", 20, 21)
    A("v_rcp_f32 v20, v20")
    gemv(48, 22, CK, 4, 40, waits=lambda t: 3 - t)
    pair128(32, 48)
    A("v_mul_f32 v32, v32, v20", "v_mul_f32 v33, v33, v20", "v_cvt_pk_bf16_f32 v24, v32, v33",
      "s_mov_b32 exec_lo, 0x00ff00ff", "s_mov_b32 exec_hi, 0x00ff00ff", "ds_write_b32 v17, v24", "s_mov_b64 exec, -1",
      "ds_read_b128 v[32:35], v18", "ds_read_b128 v[36:39], v18 offset:16",
      f"s_lshl_b32 {s(sT0)}, {s(sH)}, 3", f"s_add_u32 {s(sT0)}, {s(sT0)}, {s(sJ)}", f"s_lshl_b32 {s(sT0)}, {s(sT0)}, 10", f"s_add_u32 {s(sT0)}, {s(sT0)}, {OMSG + 0x40000}",
      "s_waitcnt lgkmcnt(0)")
    gemv(48, 32, WU, 16, 40)
    pair256(32, 48)
    A(f"v_mov_b32 v34, 0", f"v_mov_b32 v35, {s(sTAG)}", f"buffer_store_dwordx4 v[32:35], {v(V16)}, {s(RWS,4)}, {s(sT0)} offen sc1", "s_nop 1")
    stamp(14)
    A("s_branch L_helper2")

    A("L_hb:")
    A("v_mov_b32 v28, 0", "v_mov_b32 v29, 0", "v_mov_b32 v30, 0", "v_mov_b32 v31, 0", f"ds_write_b128 {v(VFL)}, v[28:31]", "s_waitcnt lgkmcnt(0)")
    ws_shift()
    srd(R0, P_BWQ, 4 << 20); srd(R1, P_BX, 1024); srd(RWS, P_WS, WSSZ)
    A(f"s_load_dwordx2 {s(sTAG,2)}, {s(P_WS,2)}, {EPOCH}")
    A("s_barrier")
    A(f"s_cmp_eq_u32 {s(sJ)}, 0", "s_cbranch_scc0 L_noinit",
      f"s_add_u32 {s(sT0)}, {s(sT2)}, {QCNT}", f"v_mov_b32 v29, {28*ND0}", "s_mov_b64 exec, 1",
      f"buffer_store_dword v29, v28, {s(RWS,4)}, {s(sT0)} offen sc1", "s_mov_b64 exec, -1", "L_noinit:")
    if nowq: A(f"s_mov_b32 {s(R0+2)}, 0")
    if nowq == 2: A(f"s_mov_b32 {s(R1+2)}, 0")
    x_loads(); slice_loads(WSL, R0, 13)
    q_partial(0, 0)
    if abl < 1: A(f"s_cmp_eq_u32 {s(sJ)}, 7", "s_cbranch_scc1 L_acu_hb")
    A("L_hb2:")
    if abl == 4: A("s_sleep 64", "s_sleep 64")
    if abl != 3: gather_q(LQB)
    else: A("s_sleep 64")
    flag_add(FQ, 24)
    stamp(2)
    A("s_branch L_helper2")

    A("L_nothelper:")
    A(f"s_cmp_lt_u32 {s(sW)}, 4", "s_cbranch_scc1 L_w03")
    A(f"s_cmp_eq_u32 {s(sW)}, {9 if nopf else 6}", "s_cbranch_scc0 L_nopf")
    A(f"s_getpc_b64 {s(sM0,2)}", "L_pc:", f"s_sub_u32 {s(sM0)}, {s(sM0)}, L_pc-{NAME}_kernel", f"s_subb_u32 {s(sM0+1)}, {s(sM0+1)}, 0")
    A(f"s_and_b32 {s(sT0)}, {s(sH)}, 3", f"s_lshl_b32 {s(sT0)}, {s(sT0)}, 13", f"v_lshlrev_b32 v13, 7, v0", f"v_add_u32 v13, {s(sT0)}, v13",
      f"v_min_u32 v13, L_codeend-{NAME}_kernel-4, v13", f"global_load_dword v31, v13, {s(sM0,2)}")
    A("L_nopf:")
    A(f"s_cmp_eq_u32 {s(sJ)}, 7", "s_cbranch_scc1 L_acu")
    A("s_barrier", "s_waitcnt lgkmcnt(0)")
    if diag: A("s_sleep 127", "s_sleep 127", "s_sleep 127", "s_sleep 127", "s_sleep 127", "s_sleep 127", "s_sleep 127", "s_sleep 127", "s_sleep 127")
    A("s_branch L_fin")
    A("L_w03:")
    A(f"s_cmp_eq_u32 {s(sJ)}, 7", "s_cbranch_scc1 L_acu")

    if pattern == 0:
        A(f"s_mul_i32 {s(sT0)}, {s(sW)}, 7", f"s_add_u32 {s(sT0)}, {s(sT0)}, {s(sJ)}")
    elif pattern == 1:
        A(f"s_lshl_b32 {s(sT0)}, {s(sJ)}, 2", f"s_add_u32 {s(sT0)}, {s(sT0)}, {s(sW)}")
    def item_addr():
        A(f"s_add_u32 {s(sOFF)}, {s(sCUR)}, {s(sROT)}")
        if PERM == 1:
            A(f"s_and_b32 {s(sT0)}, {s(sOFF)}, 7", f"s_lshl_b32 {s(sT0)}, {s(sT0)}, 6", f"s_bfe_u32 {s(sOFF)}, {s(sOFF)}, {3 | (6 << 16)}", f"s_add_u32 {s(sOFF)}, {s(sOFF)}, {s(sT0)}")
        elif PERM == 2:
            A(f"s_and_b32 {s(sT0)}, {s(sOFF)}, 3", f"s_lshl_b32 {s(sT0)}, {s(sT0)}, 3", f"s_bfe_u32 {s(sT1)}, {s(sOFF)}, {2 | (3 << 16)}", f"s_add_u32 {s(sT0)}, {s(sT0)}, {s(sT1)}",
              f"s_and_b32 {s(sOFF)}, {s(sOFF)}, 0x1e0", f"s_add_u32 {s(sOFF)}, {s(sOFF)}, {s(sT0)}")
        else: A(f"s_and_b32 {s(sOFF)}, {s(sOFF)}, 511")
        A(f"s_lshl_b32 {s(sOFF)}, {s(sOFF)}, 12", f"s_add_u32 {s(sOFF)}, {s(sOFF)}, {s(sHB)}")
    A(f"s_mov_b32 {s(sCUR)}, {s(sT0)}", f"s_lshl_b32 {s(sHB)}, {s(sH)}, 21", f"s_mul_i32 {s(sROT)}, {s(sH)}, {ROT}")
    item_addr()
    def stream_setup():
        A(f"v_lshl_add_u32 {v(VK)}, {v(VK)}, 8, {v(VD)}")
        if kplain: A(f"v_mov_b32 {v(VK)}, {v(V16)}")
        srd(R0, P_K, 64 << 20); srd(R1, P_V, 64 << 20)
        A(f"s_lshl_b32 {s(sT0)}, {s(sH)}, 8", f"s_add_u32 {s(sT0)}, {s(sT0)}, {QCNT}", f"s_add_u32 {s(sQP)}, {s(P_WS)}, {s(sT0)}", f"s_addc_u32 {s(sQP+1)}, {s(P_WS+1)}, 0")
    A("s_waitcnt lgkmcnt(0)")
    ws_shift()
    stream_setup()
    A("s_barrier")
    Q, ACC, S_, M_, L_ = 12, 28, 32, 36, 37
    TT, UU, AL, MC, PP, PK, MK = 38, 39, 40, 41, 42, 46, 48
    NL = 2 if T <= 8 else 3
    LOOP0 = ND0 - 1
    def slot(i):
        if i <= LOOP0: return i % 6
        return (LOOP0 + (i - LOOP0) % NL) % 6
    slotK = lambda i: 64 + 32*slot(i)
    slotV = lambda i: 64 + 32*slot(i) + 16
    st = dict(issued=0, landed=0)
    def grab():
        if noatom:
            A(f"s_add_u32 {s(sNXT)}, {s(sCUR)}, 28"); return
        A(f"s_mov_b32 {s(sNXT)}, 1", f"s_atomic_add {s(sNXT)}, {s(sQP,2)}, 0 glc")
    def take():
        lab[0] += 1
        A("s_waitcnt lgkmcnt(0)", f"s_mov_b32 {s(sCUR)}, {s(sNXT)}")
        item_addr()
        A(f"s_cmp_lt_u32 {s(sCUR)}, 512", f"s_cbranch_scc1 L_take{lab[0]}", f"s_mov_b32 {s(sOFF)}, 0",
          f"s_mov_b32 {s(R0+2)}, 0", f"s_mov_b32 {s(R1+2)}, 0")
        flag_add(FX, UU)
        A(f"L_take{lab[0]}:")
    def issue(TH):
        idx = st['issued']; it, k = divmod(idx, 8)
        if k == 0 and it > 0:
            if it < ND0:
                A(f"s_add_u32 {s(sCUR)}, {s(sCUR)}, 28"); item_addr()
            else: take()
        if k == KA and it >= ND0 - 1: grab()
        if TH and idx - st['landed'] >= TH:
            A(f"s_waitcnt vmcnt({TH-1})"); st['landed'] = idx - (TH-1)
        if k < 4: A(f"buffer_load_dwordx4 {v(slotK(it)+4*k,4)}, {v(VK)}, {s(R0,4)}, {s(sOFF)} offen offset:{1024*k} {nt}")
        else:     A(f"buffer_load_dwordx4 {v(slotV(it)+4*(k-4),4)}, {v(V16)}, {s(R1,4)}, {s(sOFF)} offen offset:{1024*(k-4)} {nt}")
        st['issued'] += 1
    def needs(x):
        if st['landed'] < x:
            A(f"s_waitcnt vmcnt({st['issued']-x})"); st['landed'] = x
    def stream_init():
        selectors(13, 14)
        for r in range(4): A(f"v_mov_b32 {v(ACC+r)}, 0")
        A(f"v_mov_b32 {v(M_)}, {hex(NEGBIG)}", f"v_mov_b32 {v(L_)}, 0", f"v_add_u32 v11, {LQB}, {v(VD)}",
          f"s_lshl_b32 {s(sT0)}, {s(sW)}, 10", f"s_add_u32 {s(sT0)}, {s(sT0)}, {LOB}", f"v_add_u32 v16, {s(sT0)}, {v(V16)}")
    def read_q():
        flag_wait(FQ, 1, UU, sleep=1)
        A(f"ds_read_b128 {v(Q,4)}, v11", "s_waitcnt lgkmcnt(0)")
    assert ND0 - 1 > NPRE or (ND0 - 1 == NPRE)
    stamp(5, 4)
    for i in range(T0): issue(T0)
    stream_init()
    while st['issued'] < 8*NPRE:
        issue(T0)
        if st['issued'] == T0 + 1: stamp(6, 4)
        if st['issued'] in (12, 18, 24, 30): stamp(7 + (st['issued'] - 12)//6, 4)
    stamp(1)
    read_q()
    stamp(2)
    done_qk = [-1]; done_pv = [-1]
    def can_issue():
        it, k = divmod(st['issued'], 8)
        prev = max([x for x in range(it) if slot(x) == slot(it)], default=-1)
        return (done_qk[0] if k < 4 else done_pv[0]) >= prev
    def advance(x):
        n = 0
        while st['issued'] < x + T:
            assert can_issue(); issue(T); n += 1
        if n == 0:
            for _ in range(CU):
                if can_issue(): issue(T)
    def consume(i):
        advance(8*i + 4)
        needs(8*i + 4)
        for r in range(4): mfma(MK+4*r, slotK(i)+4*r, Q, "0")
        done_qk[0] = i
        if nocomp:
            for r in range(4):
                if r == 0 or st['issued'] < 8*i+5+r+T: advance(8*i + 5 + r)
                needs(8*i + 5 + r)
            done_pv[0] = i
            return
        rowdot(S_, MK, 4)
        A(f"v_max3_f32 {v(TT)}, {v(S_)}, {v(S_+1)}, {v(S_+2)}", f"v_max3_f32 {v(TT)}, {v(TT)}, {v(S_+3)}, {v(M_)}")
        xrow("v_max_f32", TT, UU)
        A(f"v_sub_f32 {v(AL)}, {v(M_)}, {v(TT)}", f"v_mul_f32 {v(MC)}, {s(sC)}, {v(TT)}", f"v_mul_f32 {v(AL)}, {s(sC)}, {v(AL)}",
          f"v_mov_b32 {v(M_)}, {v(TT)}", f"v_exp_f32 {v(AL)}, {v(AL)}")
        for r in range(4): A(f"v_fma_f32 {v(PP+r)}, {v(S_+r)}, {s(sC)}, -{v(MC)}")
        for r in range(4): A(f"v_exp_f32 {v(PP+r)}, {v(PP+r)}")
        for r in range(4): A(f"v_mul_f32 {v(ACC+r)}, {v(AL)}, {v(ACC+r)}")
        A(f"v_cvt_pk_bf16_f32 {v(PK)}, {v(PP)}, {v(PP+1)}", f"v_cvt_pk_bf16_f32 {v(PK+1)}, {v(PP+2)}, {v(PP+3)}")
        A(f"v_fma_f32 {v(L_)}, {v(L_)}, {v(AL)}, {v(PP)}", f"v_add_f32 {v(PP+1)}, {v(PP+1)}, {v(PP+2)}",
          f"v_add_f32 {v(L_)}, {v(L_)}, {v(PP+3)}", f"v_add_f32 {v(L_)}, {v(L_)}, {v(PP+1)}")
        for r in range(4): masked(MK+4*r, PK + (r >> 1), r & 1)
        for r in range(4):
            if r == 0 or st['issued'] < 8*i+5+r+T: advance(8*i + 5 + r)
            needs(8*i + 5 + r)
            mfma(ACC, MK+4*r, slotV(i)+4*r, ACC)
        done_pv[0] = i
    assert T <= 8, "loop exit test assumes one item of lookahead"
    for i in range(LOOP0):
        consume(i)
        if i in (6, 8, 10, 12): stamp(5 + (i-6)//2, 3)
    assert st['issued'] == 8*LOOP0 + T, (st, LOOP0)
    st['landed'] = 8*LOOP0
    A("L_loop:")
    for i in range(LOOP0, LOOP0 + NL):
        consume(i)
        A(f"s_cmp_lt_u32 {s(sCUR)}, 512", f"s_cbranch_scc0 L_sdone" if i < LOOP0 + NL - 1 else "s_cbranch_scc1 L_loop")
    A("L_sdone:")
    xrow("v_add_f32", L_, UU)
    A("s_nop 1")
    pair256(34, ACC)
    A("ds_write_b128 v16, v[34:37]")
    flag_add(FP, UU)
    stamp(4)
    A("s_branch L_fin")

    A("L_helper2:")
    def wo_loads():
        for t in range(16):
            if t % 4 == 0: A(f"s_mov_b32 {s(sT0)}, {1024*t}")
            A(f"buffer_load_dwordx4 {v(WSL+4*t,4)}, v13, {s(R4,4)}, {s(sT0)} offen offset:{1024*(t&3)} {nt}")
    A(f"v_lshrrev_b32 v14, 3, v0", f"v_lshlrev_b32 v13, 14, v14", f"v_and_b32 v15, 7, v0", f"v_lshl_add_u32 v13, v15, 4, v13",
      f"s_lshl_b32 {s(sT0)}, {s(sH)}, 17", f"s_lshl_b32 {s(sT2)}, {s(sJ)}, 7", f"s_add_u32 {s(sT0)}, {s(sT0)}, {s(sT2)}", f"v_add_u32 v13, {s(sT0)}, v13")
    A(f"s_lshl_b32 {s(sT0)}, {s(sAB)}, 8", f"s_add_u32 {s(sT0)}, {s(sT0)}, {LOTB}", f"v_lshl_add_u32 v14, v14, 5, {s(sT0)}", f"v_add_u32 v15, {s(sT0)}, v27")
    srd(R3, P_OUT, 2048)
    A(f"s_cmp_eq_u32 {s(sAB)}, 1")
    srd_sel(R4, P_AWO, P_BWO, 4 << 20)
    A(f"s_lshl_b32 {s(sT1)}, {s(sAB)}, 5", f"s_add_u32 {s(sT1)}, {s(sT1)}, {s(sH)}", f"s_lshl_b32 {s(sT1)}, {s(sT1)}, 13", f"s_add_u32 {s(sT1)}, {s(sT1)}, {OMSG}")
    if late_wo: flag_wait(FX, NX, 24, sleep=xsleep)
    stamp(3, 1)
    wo_loads()
    A(f"s_cmp_eq_u32 {s(sAB)}, 1", "s_cbranch_scc1 L_ha_tail")
    A(f"v_add_u32 v30, {LOB}, {v(V16)}", f"v_and_b32 v24, 1, v0", f"v_cmp_eq_u32 {s(sM0,2)}, 1, v24", f"v_mov_b32 v35, {s(sTAG)}",
      f"s_lshl_b32 {s(sT0)}, {s(sJ)}, 10", f"s_add_u32 {s(sT0)}, {s(sT0)}, {s(sT1)}")
    flag_wait(FP, 4, 24, sleep=0 if late_wo else 1)
    for w in range(4): A(f"ds_read_b128 {v(MSG+4*w,4)}, v30 offset:{1024*w}")
    stamp(4)
    A("s_waitcnt lgkmcnt(0)")
    A(f"v_max3_f32 v28, {v(MSG+2)}, {v(MSG+6)}, {v(MSG+10)}", f"v_max_f32 v28, v28, {v(MSG+14)}")
    for w in range(4): A(f"v_sub_f32 {v(MSG+4*w+2)}, {v(MSG+4*w+2)}, v28")
    for w in range(4): A(f"v_mul_f32 {v(MSG+4*w+2)}, {s(sC)}, {v(MSG+4*w+2)}")
    for w in range(4): A(f"v_exp_f32 {v(MSG+4*w+2)}, {v(MSG+4*w+2)}")
    A(f"v_mul_f32 v32, {v(MSG)}, {v(MSG+2)}", f"v_mul_f32 v33, {v(MSG+1)}, {v(MSG+2)}", f"v_mul_f32 v29, {v(MSG+3)}, {v(MSG+2)}")
    for w in range(1, 4):
        A(f"v_fmac_f32 v29, {v(MSG+4*w+3)}, {v(MSG+4*w+2)}", f"v_fmac_f32 v32, {v(MSG+4*w)}, {v(MSG+4*w+2)}", f"v_fmac_f32 v33, {v(MSG+4*w+1)}, {v(MSG+4*w+2)}")
    A(f"v_cndmask_b32 v34, v28, v29, {s(sM0,2)}",
      f"buffer_store_dwordx4 v[32:35], {v(V16)}, {s(RWS,4)}, {s(sT0)} offen sc1")
    stamp(5, 1)
    gather8_loads()
    stamp(6, 1)
    for jj in range(8): A(f"v_mov_b32_dpp {v(MSG+4*jj+3)}, {v(MSG+4*jj+2)} quad_perm:[0,0,2,2] row_mask:0xf bank_mask:0xf")
    for jj in range(8): A(f"v_mov_b32_dpp {v(MSG+4*jj+2)}, {v(MSG+4*jj+2)} quad_perm:[1,1,3,3] row_mask:0xf bank_mask:0xf")
    mj = lambda jj: v(MSG+4*jj+3)
    A(f"v_max3_f32 v28, {mj(0)}, {mj(1)}, {mj(2)}", f"v_max3_f32 v29, {mj(3)}, {mj(4)}, {mj(5)}", f"v_max3_f32 v28, v28, {mj(6)}, {mj(7)}", f"v_max_f32 v28, v28, v29",
      f"v_mul_f32 v28, {s(sC)}, v28")
    for jj in range(8): A(f"v_fma_f32 {mj(jj)}, {mj(jj)}, {s(sC)}, -v28")
    for jj in range(8): A(f"v_exp_f32 {mj(jj)}, {mj(jj)}")
    A(f"v_mul_f32 v29, {v(MSG+2)}, {mj(0)}", f"v_mul_f32 v32, {v(MSG)}, {mj(0)}", f"v_mul_f32 v33, {v(MSG+1)}, {mj(0)}")
    for jj in range(1, 8):
        A(f"v_fmac_f32 v29, {v(MSG+4*jj+2)}, {mj(jj)}", f"v_fmac_f32 v32, {v(MSG+4*jj)}, {mj(jj)}", f"v_fmac_f32 v33, {v(MSG+4*jj+1)}, {mj(jj)}")
    A(f"v_rcp_f32 v29, v29", f"v_mul_f32 v32, v32, v29", f"v_mul_f32 v33, v33, v29")
    A("s_branch L_tail_common")
    A("L_ha_tail:")
    gather8(32)
    stamp(6, 1)
    A("L_tail_common:")
    A(f"v_cvt_pk_bf16_f32 v24, v32, v33", f"ds_write_b32 v15, v24",
      f"ds_read_b128 {v(XR,4)}, v14", f"ds_read_b128 {v(XR+4,4)}, v14 offset:16")
    A(f"s_lshl_b32 {s(sT1)}, {s(sAB)}, 3", f"s_add_u32 {s(sT1)}, {s(sT1)}, {s(sJ)}", f"s_lshl_b32 {s(sT1)}, {s(sT1)}, 14", f"s_add_u32 {s(sT1)}, {s(sT1)}, {YMSG}",
      f"s_lshl_b32 {s(sT0)}, {s(sH)}, 9", f"s_add_u32 {s(sT0)}, {s(sT0)}, {s(sT1)}", f"v_lshlrev_b32 v37, 2, v27",
      f"v_and_b32 v36, 31, v0", f"v_lshlrev_b32 v36, 9, v36", f"s_lshl_b32 {s(sT2)}, {s(sH)}, 4", f"s_add_u32 {s(sT1)}, {s(sT1)}, {s(sT2)}",
      f"v_mov_b32 v34, {s(sTAG)}", f"s_mov_b32 {s(sBASE)}, -1", f"s_mov_b32 {s(sBASE+1)}, 0")
    A(f"s_xor_b32 {s(sT3)}, {s(sAB)}, 1", f"s_lshl_b32 {s(sT3)}, {s(sT3)}, 10", f"s_lshl_b32 {s(sT2)}, {s(sJ)}, 7", f"s_add_u32 {s(sT3)}, {s(sT3)}, {s(sT2)}",
      f"s_lshl_b32 {s(sT2)}, {s(sH)}, 2", f"s_add_u32 {s(sT3)}, {s(sT3)}, {s(sT2)}")
    A("s_waitcnt vmcnt(0) lgkmcnt(0)")
    gemv(28, XR, WSL, 16, 40)
    pair128(32, 28)
    A(f"s_mov_b32 exec_lo, 0x00ff00ff", f"s_mov_b32 exec_hi, 0x00ff00ff",
      f"buffer_store_dwordx3 v[32:34], v37, {s(RWS,4)}, {s(sT0)} offen sc1", f"s_mov_b64 exec, {s(sBASE,2)}")
    stamp(7, 1)
    poll([f"buffer_load_dwordx3 v[40:42], v36, {s(RWS,4)}, {s(sT1)} offen sc1"], [[42]], base=s(sBASE,2))
    stamp(8, 1)
    A("s_mov_b64 exec, -1")
    for k in (8, 4, 2, 1):
        for e in range(2): A(f"v_add_f32_dpp {v(40+e)}, {v(40+e)}, {v(40+e)} row_ror:{k} row_mask:0xf bank_mask:0xf")
    A("v_mov_b32 v24, v40", "v_mov_b32 v28, v41", "v_mov_b32 v29, 0", "v_permlane16_swap_b32 v40, v24", "v_permlane16_swap_b32 v41, v28",
      "v_add_f32 v40, v40, v24", "v_add_f32 v41, v41, v28",
      f"v_cvt_pk_bf16_f32 v24, v40, v41", "s_mov_b64 exec, 1",
      f"buffer_store_dword v24, v29, {s(R3,4)}, {s(sT3)} offen")
    A(f"s_cmp_lg_u32 s2, 0", "s_cbranch_scc1 L_noepoch", f"s_lshl_b32 {s(sT0)}, {s(sAB)}, 2",
      f"buffer_store_dword v34, v29, {s(RWS,4)}, {s(sT0)} offen offset:{EPOCH}", "L_noepoch:", "s_mov_b64 exec, -1")
    stamp(15)
    A("s_branch L_fin")

    ckr = {1: 64, 2: 96, 3: 32}
    def ckv_half(rho, hf, TH=0):
        A(f"s_add_u32 {s(sT0)}, {s(sOFF)}, {65536*rho + 4096*hf}")
        for x in range(4):
            if TH: A(f"s_waitcnt vmcnt({TH-1})")
            A(f"buffer_load_dwordx4 {v(ckr[rho]+16*hf+4*x,4)}, {v(V16)}, {s(R0,4)}, {s(sT0)} offen offset:{1024*x} {nt}")
    def ckv_loads(TA):
        srd(R0, P_CKV, 8 << 20)
        A(f"s_lshl_b32 {s(sOFF)}, {s(sH)}, 18", f"s_lshl_b32 {s(sT0)}, {s(sW)}, 13", f"s_add_u32 {s(sOFF)}, {s(sOFF)}, {s(sT0)}",
          f"s_mul_i32 {s(sSTR)}, {s(sW)}, {8*RS}", f"s_mov_b32 m0, {s(sSTR)}", f"s_mov_b32 {s(sT0)}, {s(sOFF)}")
        for x in range(8):
            if TA and x >= TA: A(f"s_waitcnt vmcnt({TA-1})")
            A(f"buffer_load_dwordx4 {v(V16)}, {s(R0,4)}, {s(sT0)} offen {nt} lds")
            if x < 7: A(f"s_add_u32 m0, m0, {RS}", f"s_addk_i32 {s(sT0)}, 1024")
        for rho in (1, 2):
            for hf in range(2): ckv_half(rho, hf, TA)
    A("L_acu_hb:")
    A("s_nop 1")
    ckv_loads(TAH)
    A(f"s_movk_i32 {s(sT0)}, {FLG1}", f"s_add_u32 {s(sTAG2)}, {s(sTAG2)}, 0x9e3779b9")
    poll([f"buffer_load_dwordx4 v[16:19], {v(V16)}, {s(RWS,4)}, {s(sT0)} offen sc1"], [[16, 17, 18, 19]], tag=sTAG2)
    stamp(5, 2)
    for x in range(32):
        if x % 4 == 0: A(f"s_mov_b32 {s(sT0)}, {QABS + 1024*x}")
        A(f"buffer_load_dwordx4 {v(128+4*x,4)}, {v(V16)}, {s(RWS,4)}, {s(sT0)} offen offset:{1024*(x&3)} sc1")
    A(f"v_add_u32 v13, {LB1}, {v(V16)}")
    for x in range(32):
        A(f"s_waitcnt vmcnt({31-x})", f"ds_write_b128 v13, {v(128+4*x,4)} offset:{RS*x}")
    A("s_branch L_acu_rest")
    A("L_acu_ha:")
    ckv_loads(TAH)
    A("s_branch L_acu_rest")
    A("L_acu:")
    A("s_waitcnt lgkmcnt(0)", "s_barrier")
    ws_shift()
    srd(RWS, P_WS, WSSZ)
    if abl >= 1: A(f"s_cmp_lt_u32 {s(sW)}, 4", "s_cbranch_scc1 L_acu_stream", "s_branch L_fin")
    ckv_loads(TA)
    A("L_acu_rest:")
    A("s_setprio 0")
    aQK, aTR, aMXw, aMX0, aMX1, aPw, aP0, aP1, aCW = 14, 16, 18, 19, 20, 21, 22, 23, 28
    sKT, sHT = sT1, sT2
    A(f"s_and_b32 {s(sKT)}, {s(sW)}, 3", f"s_lshr_b32 {s(sHT)}, {s(sW)}, 2", f"s_movk_i32 {s(sT3)}, {RS}",
      f"v_mul_lo_u32 v24, v11, {s(sT3)}", f"v_lshl_add_u32 v24, v12, 4, v24",
      f"s_mul_i32 {s(sT0)}, {s(sKT)}, {16*RS}", f"v_add_u32 {v(aQK)}, {s(sT0)}, v24", f"v_add_u32 {v(aQK+1)}, {LB1}, {v(aQK)}",
      f"s_mul_i32 {s(sT0)}, {s(sHT)}, {16*RS}", f"s_add_u32 {s(sT0)}, {s(sT0)}, {LB1}", f"v_add_u32 v13, {s(sT0)}, v24",
      f"v_lshrrev_b32 v24, 2, v0", f"v_mul_lo_u32 v24, v24, {s(sT3)}", f"v_and_b32 v30, 3, v0", f"v_lshl_add_u32 v24, v30, 3, v24",
      f"s_lshl_b32 {s(sT0)}, {s(sW)}, 7", f"v_add_u32 {v(aTR)}, {s(sT0)}, v24", f"v_add_u32 {v(aTR+1)}, {LB1}, {v(aTR)}",
      f"s_lshl_b32 {s(sT0)}, {s(sHT)}, 8", f"v_lshl_add_u32 v24, v11, 4, {s(sT0)}", f"v_add_u32 {v(aMX0)}, {LMX}, v24",
      f"v_xor_b32 v24, 256, v24", f"v_add_u32 {v(aMX1)}, {LMX}, v24",
      f"s_lshl_b32 {s(sT0)}, {s(sKT)}, 2", f"v_add_u32 {v(aMXw)}, {s(sT0)}, {v(aMX0)}",
      f"s_lshl_b32 {s(sT0)}, {s(sHT)}, 10", f"v_add_u32 v24, {s(sT0)}, {v(V16)}", f"v_add_u32 {v(aP0)}, {LP}, v24",
      f"v_xor_b32 v24, 1024, v24", f"v_add_u32 {v(aP1)}, {LP}, v24",
      f"s_lshr_b32 {s(sT0)}, {s(sKT)}, 1", f"s_lshl_b32 {s(sT0)}, {s(sT0)}, 11", f"s_and_b32 {s(sT3)}, {s(sKT)}, 1", f"s_lshl_b32 {s(sT3)}, {s(sT3)}, 3",
      f"s_add_u32 {s(sT0)}, {s(sT0)}, {s(sT3)}", f"v_add_u32 {v(aPw)}, {s(sT0)}, {v(aP0)}",
      f"v_add_u32 {v(aCW)}, {s(sSTR)}, {v(V16)}", f"v_add_u32 {v(aCW+1)}, {LB1}, {v(aCW)}")
    A("s_waitcnt lgkmcnt(0)", "s_barrier")
    stamp(6, 2)
    QA, AC, ST = 128, 192, 224
    for ks in range(16): A(f"ds_read_b128 {v(QA+4*ks,4)}, v13 offset:{64*ks}")
    ckv_half(3, 0)
    def ck_write(rho):
        for x in range(8): A(f"ds_write_b128 {v(aCW+(rho&1))}, {v(ckr[rho]+4*x,4)} offset:{RS*x}")
    A(f"s_waitcnt vmcnt(12) lgkmcnt(0)", "s_barrier")
    ck_write(1)
    SS, MM, ALP, PO, MXR = 64, 68, 70, 72, 72
    ALP = 88; LL = 92; PT = 30
    for rho in range(4):
        bq = rho & 1
        stamp(7 + rho, 2)
        for ks in range(7): A(f"ds_read_b128 {v(ST+4*ks,4)}, {v(aQK+bq)} offset:{64*ks}")
        for ks in range(16):
            if ks + 7 < 16: A(f"ds_read_b128 {v(ST+4*((ks+7)&7),4)}, {v(aQK+bq)} offset:{64*(ks+7)}")
            A(f"s_waitcnt lgkmcnt({min(7, 15-ks)})")
            mfma(SS, ST+4*(ks & 7), QA+4*ks, "0" if ks == 0 else SS)
        if rho == 2:
            A("s_waitcnt vmcnt(0)"); ck_write(3)
        A(f"v_max3_f32 v24, {v(SS)}, {v(SS+1)}, {v(SS+2)}", f"v_max_f32 v24, v24, {v(SS+3)}")
        xrow("v_max_f32", 24, PT)
        A("s_mov_b64 exec, 0xffff", f"ds_write_b32 {v(aMXw)}, v24", "s_mov_b64 exec, -1", "s_waitcnt lgkmcnt(0)", "s_barrier")
        A(f"ds_read_b128 {v(MXR,4)}, {v(aMX0)}", f"ds_read_b128 {v(MXR+4,4)}, {v(aMX1)}")
        def tr_read(x):
            Tt, kap = x >> 1, x & 1
            b = ST + 4*x
            A(f"ds_read_b64_tr_b16 {v(b,2)}, {v(aTR+bq)} offset:{32*kap*RS + 32*Tt}", f"ds_read_b64_tr_b16 {v(b+2,2)}, {v(aTR+bq)} offset:{(32*kap+16)*RS + 32*Tt}")
        for x in range(4): tr_read(x)
        A("s_waitcnt lgkmcnt(8)")
        for u in range(2):
            b = MXR + 4*u
            A(f"v_max3_f32 {v(b)}, {v(b)}, {v(b+1)}, {v(b+2)}")
            if rho == 0: A(f"v_max_f32 {v(MM+u)}, {v(b)}, {v(b+3)}")
            else:
                A(f"v_max3_f32 {v(b)}, {v(b)}, {v(b+3)}, {v(MM+u)}", f"v_sub_f32 {v(ALP+2*u)}, {v(MM+u)}, {v(b)}", f"v_mov_b32 {v(MM+u)}, {v(b)}",
                  f"v_mul_f32 {v(ALP+2*u)}, {s(sC)}, {v(ALP+2*u)}", f"v_exp_f32 {v(ALP+2*u)}, {v(ALP+2*u)}")
        A(f"v_mul_f32 v24, {s(sC)}, {v(MM)}")
        for r in range(4): A(f"v_fma_f32 {v(SS+r)}, {v(SS+r)}, {s(sC)}, -v24")
        for r in range(4): A(f"v_exp_f32 {v(SS+r)}, {v(SS+r)}")
        A(f"v_cvt_pk_bf16_f32 {v(PT)}, {v(SS)}, {v(SS+1)}", f"v_cvt_pk_bf16_f32 {v(PT+1)}, {v(SS+2)}, {v(SS+3)}", f"ds_write_b64 {v(aPw)}, {v(PT,2)}")
        for x in range(4, 8): tr_read(x)
        A(f"v_add_f32 {v(SS)}, {v(SS)}, {v(SS+1)}", f"v_add_f32 {v(SS+2)}, {v(SS+2)}, {v(SS+3)}")
        if rho == 0: A(f"v_add_f32 {v(LL)}, {v(SS)}, {v(SS+2)}")
        else:
            A(f"v_fma_f32 {v(LL)}, {v(LL)}, {v(ALP)}, {v(SS)}", f"v_add_f32 {v(LL)}, {v(LL)}, {v(SS+2)}")
            for Tt in range(4):
                for u in range(2):
                    for r in (0, 2):
                        d = v(AC+8*Tt+4*u+r, 2)
                        A(f"v_pk_mul_f32 {d}, {d}, {v(ALP+2*u,2)} op_sel_hi:[1,0]")
        A("s_waitcnt lgkmcnt(0)", "s_barrier")
        for kap in range(2):
            for u in range(2): A(f"ds_read_b128 {v(PO+8*kap+4*u,4)}, {v(aP0+u)} offset:{2048*kap}")
        nw = 0
        if rho == 0:
            A(f"s_waitcnt vmcnt(4)"); ck_write(2); nw = 8
            ckv_half(3, 1)
        for kap in range(2):
            A(f"s_waitcnt lgkmcnt({nw + (2 if kap == 0 else 0)})")
            for Tt in range(4):
                for u in range(2):
                    d = AC+8*Tt+4*u
                    mfma(d, ST+4*(2*Tt+kap), PO+8*kap+4*u, "0" if (rho == 0 and kap == 0) else d)
    stamp(11)
    xrow("v_add_f32", LL, 24)
    A(f"s_movk_i32 {s(sT3)}, {RS}", f"v_mul_lo_u32 v24, v11, {s(sT3)}", f"v_lshl_add_u32 v24, v12, 3, v24", f"s_lshl_b32 {s(sT0)}, {s(sW)}, 7", f"v_add_u32 v24, {s(sT0)}, v24",
      f"s_mul_i32 {s(sT0)}, {s(sHT)}, {16*RS}", f"v_add_u32 v14, {s(sT0)}, v24", f"s_sub_u32 {s(sT0)}, {16*RS}, {s(sT0)}", f"v_add_u32 v15, {s(sT0)}, v24")
    A("s_mov_b64 exec, 0xffff", f"ds_write_b32 {v(aMXw)}, {v(LL)} offset:1024", "s_mov_b64 exec, -1")
    for Tt in range(4):
        for u in range(2):
            d = AC+8*Tt+4*u; o = 40 + 4*Tt + 2*u
            A(f"v_cvt_pk_bf16_f32 {v(o)}, {v(d)}, {v(d+1)}", f"v_cvt_pk_bf16_f32 {v(o+1)}, {v(d+2)}, {v(d+3)}", f"ds_write_b64 {v(14+u)}, {v(o,2)} offset:{32*Tt}")
    A(f"s_mul_i32 {s(sT0)}, {s(sW)}, {4*RS}", f"v_add_u32 v13, {s(sT0)}, {v(V16)}",
      f"s_lshl_b32 {s(sT1)}, {s(sH)}, 15", f"s_lshl_b32 {s(sT0)}, {s(sW)}, 12", f"s_add_u32 {s(sT1)}, {s(sT1)}, {s(sT0)}", f"s_add_u32 {s(sT1)}, {s(sT1)}, {PART}")
    A("s_waitcnt lgkmcnt(0)", "s_barrier")
    for x in range(4): A(f"ds_read_b128 {v(40+4*x,4)}, v13 offset:{RS*x}")
    for x in range(4): A(f"s_waitcnt lgkmcnt({3-x})", f"buffer_store_dwordx4 {v(40+4*x,4)}, {v(V16)}, {s(RWS,4)}, {s(sT1)} offen offset:{1024*x} sc1")
    A(f"v_and_b32 v24, 31, v0", f"v_lshlrev_b32 v30, 4, v24", f"v_add_u32 v30, {LLS}, v30", f"ds_read_b128 v[56:59], v30",
      f"v_and_b32 v20, 16, v0", f"v_cmp_eq_u32 vcc, 0, v20", f"v_cndmask_b32 v20, {v(MM)}, {v(MM+1)}, vcc",
      f"v_lshlrev_b32 v24, 9, v24", f"s_lshl_b32 {s(sT0)}, {s(sH)}, 4", f"s_add_u32 {s(sT0)}, {s(sT0)}, {MLB}", "s_waitcnt lgkmcnt(0)",
      "v_add_f32 v56, v56, v57", "v_add_f32 v58, v58, v59", "v_add_f32 v21, v56, v58")
    A("s_waitcnt vmcnt(0)", "s_barrier")
    stamp(12)
    A(f"s_cmp_ge_u32 {s(sW)}, 6", "s_cbranch_scc1 L_fin")
    A(f"s_cmp_lt_u32 {s(sW)}, 4", "s_cbranch_scc1 L_acu_stream")
    A("s_setprio 3")
    A(f"s_lshl_b32 {s(sT1)}, {s(sH)}, 13", f"s_add_u32 {s(sT1)}, {s(sT1)}, {QMSG}")
    A(f"s_cmp_eq_u32 {s(sW)}, 5", "s_cbranch_scc0 L_hb2")
    A(f"v_mov_b32 v22, {s(sTAG)}", "s_mov_b32 exec_hi, 0", f"buffer_store_dwordx3 v[20:22], v24, {s(RWS,4)}, {s(sT0)} offen sc1",
      "s_mov_b64 exec, -1", "s_nop 0", "s_branch L_ha2")
    A("L_acu_stream:")
    A(f"s_lshl_b32 {s(sHB)}, {s(sH)}, 21", f"s_mul_i32 {s(sROT)}, {s(sH)}, {ROT}")
    stream_setup()
    stream_init()
    read_q()
    if noatom: A(f"s_mov_b32 {s(sCUR)}, 512")
    grab()
    take()
    A(f"s_cmp_lt_u32 {s(sCUR)}, 512", "s_cbranch_scc0 L_sdone")
    st['issued'] = 8*LOOP0; st['landed'] = 8*LOOP0
    for n in range(T):
        idx = st['issued']; it, k = divmod(idx, 8)
        if k == KA: grab()
        if k < 4: A(f"buffer_load_dwordx4 {v(slotK(it)+4*k,4)}, {v(VK)}, {s(R0,4)}, {s(sOFF)} offen offset:{1024*k} {nt}")
        else:     A(f"buffer_load_dwordx4 {v(slotV(it)+4*(k-4),4)}, {v(V16)}, {s(R1,4)}, {s(sOFF)} offen offset:{1024*(k-4)} {nt}")
        st['issued'] += 1
    A("s_branch L_loop")

    A("L_fin:")
    if diag:
        A("s_waitcnt lgkmcnt(0)")
        A(f"s_lshl_b32 {s(sT0)}, s2, 3", f"s_add_u32 {s(sT0)}, {s(sT0)}, {s(sW)}", f"s_mul_i32 {s(sT0)}, {s(sT0)}, {8*NTS}",
          f"s_add_u32 {s(sT0)}, {s(sT0)}, {TSOFF}", f"s_add_u32 {s(sM0)}, {s(P_WS)}, {s(sT0)}", f"s_addc_u32 {s(sM0+1)}, {s(P_WS+1)}, 0",
          "v_mov_b32 v2, 0", "s_mov_b64 exec, 1")
        for k in range(NTS):
            A(f"v_mov_b32 v4, {s(sTS+k)}", f"v_mov_b32 v5, 0", f"global_store_dwordx2 v2, v[4:5], {s(sM0,2)} offset:{8*k}", "s_nop 1")
    A("L_end:", "s_endpgm", "L_codeend:")
    body, nn = A.fix()
    out = [HEADER.rstrip(), f"; @launch grid=(256,1,1) block=(512,1,1) lds={LDS_TOTAL}"]
    if diag: out.append(f"; tsinfo 2048 {NTS}")
    out += ['.amdgcn_target "amdgcn-amd-amdhsa--gfx950"', ".text", f".globl {NAME}_kernel", ".p2align 8", f".type {NAME}_kernel,@function"]
    out += [("" if l.endswith(":") else "    ") + l for l in body]
    out += ['.section .rodata,"a"', ".p2align 6", f".amdhsa_kernel {NAME}_kernel", "  .amdhsa_next_free_vgpr 256", "  .amdhsa_next_free_sgpr 102",
            "  .amdhsa_accum_offset 256", "  .amdhsa_group_segment_fixed_size 0", "  .amdhsa_kernarg_size 112", "  .amdhsa_user_sgpr_count 2",
            "  .amdhsa_user_sgpr_kernarg_segment_ptr 1", "  .amdhsa_system_sgpr_workgroup_id_x 1", ".end_amdhsa_kernel"]
    return "\n".join(out) + "\n"

if __name__ == "__main__":
    kw = {}
    outf = sys.argv[1]
    for a in sys.argv[2:]:
        k, x = a.split("=")
        try: x = eval(x)
        except Exception: pass
        kw[k] = x
    open(outf, "w").write(gen(**kw))
```

```python
import struct, sys, math
from asmlib import Asm
NAME = "concat_heads__compressed_kv_cla__mha_block_cached__decode"
f2u = lambda x: struct.unpack('<I', struct.pack('<f', x))[0]

HEADER = """; Kernarg layout for this problem (112 bytes, ptrs only, base s[0:1]):
"""
EPOCH = 0x0
FLG1 = 0x1000
QCNT = 0x2000
MLB  = 0x4000
QABS = 0x8000
QMSG = 0x10000
OMSG = 0x90000
YMSG = 0x110000
PART = 0x200000
WSSZ = 0x300000
TSOFF = 0x0F000000
RS = 1056
LB0 = 0; LB1 = 64*RS; LP = 128*RS
LM = LP + 4096
LQB = LM; LQA = LM + 256; LOTB = LM + 512; LOTA = LM + 768
LFL = LM + 1024
LMX = LM + 2048; LLS = LM + 3072; LCW = LM + 4096
LOB = LM + 5120
LDS_TOTAL = 163840
assert LOB + 4096 <= LDS_TOTAL
P_AX, P_CKV, P_AWQ, P_WUK, P_WUV, P_AWO, P_BX, P_K, P_V, P_BWQ, P_BWO, P_OUT, P_DBG, P_WS = range(4, 32, 2)
sW, sH, sJ = 3, 32, 33
sTAG, sTAG2 = 34, 35
R0, R1, RWS, R3, R4 = 36, 40, 44, 48, 52
sT0, sT1, sT2, sT3 = 56, 57, 58, 59
sC, sOFF, sSTR, sSPIN = 60, 61, 62, 63
sM0 = 64
sBASE = 66
sMK = 68
sQP, sNXT, sCUR, sHB, sROT = 68, 70, 71, 72, 73
sAB = 28
sTS = 86
NTS = 16
SPINMAX = 200000
NEGBIG = f2u(-3.0e38)

def v(a, n=1): return f"v{a}" if n == 1 else f"v[{a}:{a+n-1}]"
def s(a, n=1): return f"s{a}" if n == 1 else f"s[{a}:{a+n-1}]"

def gen(T=6, T0=None, NPRE=5, ND0=8, CU=1, KA=0, NX=1, diag=False, late_wo=True, nt="nt", pattern=0, psleep=8, TA=4, TAH=8, ROT=0, PERM=0, noatom=0, nopoll=0, nocomp=0, kplain=0, xsleep=2, abl=0, pf='sc1', nob0=0, nopf=0, xf='', nowq=0, wsbase=0, amp=None):
    A = Asm()
    T0 = T0 or T
    pf = pf.replace("_", " ")
    def stamp(k, mode=None):
        if amp:
            if k in amp[2:4] and (mode is None or mode == amp[4]):
                A(f"s_memrealtime s[84:85]", "s_waitcnt lgkmcnt(0)", f"s_mov_b32 {s(sTS+k)}, s84")
            return
        if diag and (mode is None or mode == diag):
            A(f"s_memrealtime s[84:85]", "s_waitcnt lgkmcnt(0)", f"s_mov_b32 {s(sTS+k)}, s84")
    def srd(r, p, size):
        A(f"s_mov_b32 {s(r)}, {s(p)}", f"s_mov_b32 {s(r+1)}, {s(p+1)}", f"s_mov_b32 {s(r+2)}, {hex(size)}", f"s_mov_b32 {s(r+3)}, 0x20000")
    def srd_sel(r, pa, pb, size):
        A(f"s_cselect_b32 {s(r)}, {s(pa)}, {s(pb)}", f"s_cselect_b32 {s(r+1)}, {s(pa+1)}, {s(pb+1)}",
          f"s_mov_b32 {s(r+2)}, {hex(size)}", f"s_mov_b32 {s(r+3)}, 0x20000")
    SEL = 1
    def selectors(t0, t1):
        A(f"v_and_b32 {v(t0)}, 1, v0", f"v_cmp_eq_u32 vcc, 1, {v(t0)}")
        for p in range(2):
            lo = 0x0C0C0000 | ((2*p+1) << 8) | (2*p); hi = ((2*p+1) << 24) | ((2*p) << 16) | 0x0C0C
            A(f"v_mov_b32 {v(t1+p)}, {hex(lo)}", f"v_mov_b32 {v(SEL)}, {hex(hi)}", f"v_cndmask_b32 {v(t1+p)}, {v(t1+p)}, {v(SEL)}, vcc")
        A(f"v_bfe_u32 {v(t0)}, v0, 1, 2")
        for r in range(4):
            A(f"v_cmp_eq_u32 vcc, {r}, {v(t0)}")
            for p in range(2): A(f"v_mov_b32 {v(SEL+2*r+p)}, 0x0c0c0c0c")
            for p in range(2): A(f"v_cndmask_b32 {v(SEL+2*r+p)}, {v(SEL+2*r+p)}, {v(t1+p)}, vcc")
    def masked(dst, src, p):
        for r in range(4): A(f"v_perm_b32 {v(dst+r)}, {v(src)}, {v(src)}, {v(SEL+2*r+p)}")
    def mfma(d, a, b, c):
        A(f"v_mfma_f32_16x16x32_bf16 {v(d,4)}, {v(a,4)}, {v(b,4)}, {c if isinstance(c,str) else v(c,4)}")
    def gemv(acc, X, W, n, tmp, waits=None):
        masked(tmp, X, 0)
        for t in range(n):
            if t + 1 < n: masked(tmp + 4*((t+1) & 1), X + ((t+1) >> 1), (t+1) & 1)
            if waits: A(f"s_waitcnt vmcnt({waits(t)})")
            mfma(acc, tmp + 4*(t & 1), W + 4*t, "0" if t == 0 else acc)
    def pair256(dst, acc):
        A(f"v_cmp_gt_u32 vcc, 32, v0", f"v_cndmask_b32 {v(dst)}, {v(acc+2)}, {v(acc)}, vcc", f"v_cndmask_b32 {v(dst+1)}, {v(acc+3)}, {v(acc+1)}, vcc")
    def pair128(dst, acc):
        for r in range(4): A(f"v_mov_b32_dpp {v(acc+r)}, {v(acc+r)} row_ror:8 row_mask:0xc bank_mask:0xf")
        A(f"v_permlane32_swap_b32 {v(acc)}, {v(acc+2)}", f"v_permlane32_swap_b32 {v(acc+1)}, {v(acc+3)}")
        A(f"v_add_f32 {v(dst)}, {v(acc)}, {v(acc+2)}", f"v_add_f32 {v(dst+1)}, {v(acc+1)}, {v(acc+3)}")
    def pairidx4(dst, t):
        A(f"v_lshlrev_b32 {v(dst)}, 4, v11", f"v_bfe_u32 {v(t)}, v0, 4, 1",
          f"v_lshl_add_u32 {v(dst)}, {v(t)}, 3, {v(dst)}", f"v_lshrrev_b32 {v(t)}, 5, v0", f"v_lshl_add_u32 {v(dst)}, {v(t)}, 2, {v(dst)}")
    def xrow(op, x, t, rows=(32, 16)):
        for k in rows:
            A(f"v_mov_b32 {v(t)}, {v(x)}", f"v_permlane{k}_swap_b32 {v(x)}, {v(t)}", f"{op} {v(x)}, {v(x)}, {v(t)}")
    def rowdot(dst, D, n):
        for b in range(4):
            for r in range(n):
                if b == 0: A(f"v_mov_b32_dpp {v(dst+r)}, {v(D+4*r)} quad_perm:[0,0,0,0] row_mask:0xf bank_mask:0xf")
                else: A(f"v_add_f32_dpp {v(dst+r)}, {v(D+4*r+b)}, {v(dst+r)} quad_perm:[{b},{b},{b},{b}] row_mask:0xf bank_mask:0xf")
    lab = [0]
    def poll(loads, tagregs, base="-1", sleep=0, tag=sTAG):
        lab[0] += 1; L = f"L_poll{lab[0]}"
        n = len(loads)
        mk = lambda k: s(sMK+2*k, 2)
        A(f"s_mov_b32 {s(sSPIN)}, 0")
        for k in range(n): A(loads[k])
        A(f"{L}:", "s_waitcnt vmcnt(0)")
        for k in range(n):
            t = tagregs[k]
            A(f"v_cmp_ne_u32 {mk(k)}, {s(tag)}, {v(t[0])}")
            for x in t[1:]: A(f"v_cmp_ne_u32 vcc, {s(tag)}, {v(x)}", f"s_or_b64 {mk(k)}, {mk(k)}, vcc")
        if n == 1: A(f"s_cmp_eq_u64 {mk(0)}, 0", f"s_cbranch_scc1 {L}_ok")
        else:
            A(f"s_or_b64 vcc, {mk(0)}, {mk(1)}")
            for k in range(2, n): A(f"s_or_b64 vcc, vcc, {mk(k)}")
            A(f"s_cbranch_scc0 {L}_ok")
        if sleep: A(f"s_sleep {sleep}")
        for k in range(n): A(f"s_mov_b64 exec, {mk(k)}", loads[k])
        A(f"s_mov_b64 exec, {base}", f"s_add_u32 {s(sSPIN)}, {s(sSPIN)}, 1", f"s_cmp_lt_u32 {s(sSPIN)}, {SPINMAX}", f"s_cbranch_scc1 {L}",
          "s_waitcnt vmcnt(0)", f"{L}_ok:")
    VFL = 25
    def flag_wait(off, n, tmp, sleep=0):
        lab[0] += 1; L = f"L_flag{lab[0]}"
        A(f"s_mov_b32 {s(sSPIN)}, 0", f"{L}:", f"ds_read_b32 {v(tmp)}, {v(VFL)} offset:{off}", "s_waitcnt lgkmcnt(0)",
          f"v_cmp_gt_u32 vcc, {n}, {v(tmp)}", f"s_add_u32 {s(sSPIN)}, {s(sSPIN)}, 1", f"s_cbranch_vccz {L}_ok")
        if sleep: A(f"s_sleep {sleep}")
        A(f"s_cmp_lt_u32 {s(sSPIN)}, {SPINMAX*10}", f"s_cbranch_scc1 {L}", f"{L}_ok:")
    def flag_add(off, tmp):
        A(f"v_mov_b32 {v(tmp)}, 1", "s_mov_b64 exec, 1", f"ds_add_u32 {v(VFL)}, {v(tmp)} offset:{off}", "s_mov_b64 exec, -1")
    FQ, FX, FP = 0, 4, 8

    A(f"{NAME}_kernel:")
    if amp:
        A(f"s_memrealtime s[84:85]", "s_waitcnt lgkmcnt(0)", f"s_mov_b32 {s(sTS)}, s84")
    if diag:
        A(f"s_memrealtime s[84:85]")
        for k in range(1, NTS): A(f"s_mov_b32 {s(sTS+k)}, 0")
        A("s_waitcnt lgkmcnt(0)", f"s_mov_b32 {s(sTS)}, s84")
    A("s_cmp_ge_u32 s2, 256", "s_cbranch_scc1 L_end",
      "s_load_dwordx16 s[4:19], s[0:1], 0", "s_load_dwordx8 s[20:27], s[0:1], 64", "s_load_dwordx2 s[30:31], s[0:1], 104",
      "v_lshrrev_b32 v1, 6, v0", "v_and_b32 v0, 63, v0", f"v_readfirstlane_b32 {s(sW)}, v1",
      f"s_lshr_b32 {s(sH)}, s2, 3", f"s_add_u32 {s(sJ)}, s2, {s(sH)}", f"s_and_b32 {s(sJ)}, {s(sJ)}, 7",
      f"s_mov_b32 {s(sC)}, {hex(f2u(math.log2(math.e)/math.sqrt(128)))}")
    VK, VD, V16 = 9, 10, 26
    A(f"v_and_b32 v11, 15, v0", f"v_lshrrev_b32 v12, 4, v0", f"v_lshlrev_b32 {v(V16)}, 4, v0", f"v_mov_b32 {v(VFL)}, {LFL}",
      f"v_and_b32 {v(VD)}, 3, v0", f"v_lshlrev_b32 {v(VD)}, 4, {v(VD)}", f"v_lshl_add_u32 {v(VD)}, v12, 6, {v(VD)}", f"v_bfe_u32 {v(VK)}, v0, 2, 2")
    A(f"s_sub_u32 {s(sAB)}, {s(sW)}, 4", f"s_cmp_ge_u32 {s(sAB)}, 2", "s_cbranch_scc1 L_nothelper")

    WSL = 128
    XR = 16
    WU = 64
    MSG = 192
    A("s_setprio 3")
    A(f"v_lshlrev_b32 v13, 17, v12", f"v_lshl_add_u32 v13, v11, 4, v13",
      f"s_lshl_b32 {s(sT0)}, {s(sJ)}, 7", f"v_lshl_add_u32 v14, v12, 5, {s(sT0)}",
      f"s_lshl_b32 {s(sT1)}, {s(sJ)}, 19", f"s_lshl_b32 {s(sT2)}, {s(sH)}, 8", f"s_add_u32 {s(sT1)}, {s(sT1)}, {s(sT2)}")
    def slice_loads(dst, R, voff):
        A(f"s_mov_b32 {s(sT0)}, {s(sT1)}")
        for t in range(16):
            A(f"buffer_load_dwordx4 {v(dst+4*t,4)}, {v(voff)}, {s(R,4)}, {s(sT0)} offen {nt}")
            if t < 15: A(f"s_addk_i32 {s(sT0)}, 8192")
    def x_loads():
        A(f"buffer_load_dwordx4 {v(XR,4)}, v14, {s(R1,4)}, 0 offen {xf}", f"buffer_load_dwordx4 {v(XR+4,4)}, v14, {s(R1,4)}, 0 offen offset:16 {xf}")
    def q_partial(ab, extra):
        selectors(24, 28)
        pairidx4(27, 24)
        A(f"s_waitcnt vmcnt({16+extra})")
        gemv(28, XR, WSL, 16, 40, waits=lambda t: 15 - t + extra)
        A("s_waitcnt lgkmcnt(0)", f"s_add_u32 {s(sTAG)}, {s(sTAG)}, 0x9e3779b9")
        pair256(32, 28)
        A(f"v_mov_b32 v34, 0", f"v_mov_b32 v35, {s(sTAG)}")
        A(f"s_lshl_b32 {s(sT1)}, {s(sH)}, 13", f"s_add_u32 {s(sT1)}, {s(sT1)}, {QMSG + ab*0x40000}",
          f"s_lshl_b32 {s(sT0)}, {s(sJ)}, 10", f"s_add_u32 {s(sT0)}, {s(sT0)}, {s(sT1)}",
          f"buffer_store_dwordx4 v[32:35], {v(V16)}, {s(RWS,4)}, {s(sT0)} offen sc1")
        stamp(1)
    def gather8_loads():
        A(f"s_add_u32 {s(sT2)}, {s(sT1)}, 4096")
        loads = [f"buffer_load_dwordx4 {v(MSG+4*jj,4)}, {v(V16)}, {s(RWS,4)}, {s(sT1 if jj < 4 else sT2)} offen offset:{1024*(jj&3)} {pf}" for jj in range(8)]
        poll(loads, [[MSG+4*jj+3] for jj in range(8)])
    def gather8(d):
        gather8_loads()
        for jj in (0, 2, 4, 6):
            for e in range(2): A(f"v_add_f32 {v(MSG+4*jj+e)}, {v(MSG+4*jj+e)}, {v(MSG+4*jj+4+e)}")
        for jj in (0, 4):
            for e in range(2): A(f"v_add_f32 {v(MSG+4*jj+e)}, {v(MSG+4*jj+e)}, {v(MSG+4*jj+8+e)}")
        for e in range(2): A(f"v_add_f32 {v(d+e)}, {v(MSG+e)}, {v(MSG+16+e)}")
    def gather_q(ldsoff):
        gather8(32)
        A(f"v_cvt_pk_bf16_f32 v24, v32, v33", f"v_add_u32 v15, {ldsoff}, v27", f"ds_write_b32 v15, v24")
    A(f"s_cmp_eq_u32 {s(sAB)}, 0", "s_cbranch_scc1 L_hb")

    def ws_shift():
        if wsbase: A(f"s_add_u32 {s(P_WS)}, {s(P_WS)}, {hex(wsbase)}", f"s_addc_u32 {s(P_WS+1)}, {s(P_WS+1)}, 0")
    A(f"v_lshl_add_u32 v15, {v(VK)}, 17, {v(VD)}", "s_waitcnt lgkmcnt(0)")
    ws_shift()
    if abl >= 2: A("s_barrier", "s_branch L_fin")
    srd(R0, P_AWQ, 4 << 20); srd(R1, P_AX, 1024)
    x_loads(); slice_loads(WSL, R0, 13)
    srd(R0, P_WUK, 4 << 20)
    A(f"s_load_dword {s(sTAG)}, {s(P_WS,2)}, {EPOCH+4}")
    slice_loads(WU, R0, 15)
    A("s_barrier")
    srd(RWS, P_WS, WSSZ)
    q_partial(1, 16)
    gather_q(LQA)
    stamp(2)
    A(f"v_add_u32 v15, {LQA}, {v(VD)}", f"ds_read_b128 v[16:19], v15")
    A(f"v_and_b32 v14, 1, v0", f"v_cmp_eq_u32 {s(sM0,2)}, 1, v14", f"v_lshlrev_b32 v14, 4, v14", f"v_lshl_add_u32 v14, v12, 5, v14",
      f"s_lshl_b32 {s(sT0)}, {s(sH)}, 3", f"s_add_u32 {s(sT0)}, {s(sT0)}, {s(sJ)}", f"s_lshl_b32 {s(sT1)}, {s(sT0)}, 2", f"s_add_u32 {s(sT1)}, {s(sT1)}, {FLG1}",
      f"s_lshl_b32 {s(sT0)}, {s(sT0)}, 7", f"s_add_u32 {s(sT0)}, {s(sT0)}, {QABS}", "s_waitcnt lgkmcnt(0)")
    DD, QR = 128, 30
    for t in range(16): mfma(DD+4*t, WU+4*t, 16, "0")
    rowdot(QR, DD, 16)
    for t in range(8): A(f"v_cvt_pk_bf16_f32 {v(46+t)}, {v(QR+2*t)}, {v(QR+2*t+1)}")
    for t in range(4): A(f"v_cndmask_b32 {v(46+t)}, {v(46+t)}, {v(50+t)}, {s(sM0,2)}")
    A("s_mov_b32 exec_lo, 0x00030003", "s_mov_b32 exec_hi, 0x00030003",
      f"buffer_store_dwordx4 v[46:49], v14, {s(RWS,4)}, {s(sT0)} offen sc1", "s_mov_b64 exec, -1",
      f"v_mov_b32 v15, {s(sTAG)}", "v_mov_b32 v24, 0", "s_mov_b64 exec, 1", "s_waitcnt vmcnt(0)",
      f"buffer_store_dword v15, v24, {s(RWS,4)}, {s(sT1)} offen sc1", "s_mov_b64 exec, -1")
    stamp(3, 2)
    if abl >= 1: A("s_branch L_fin")
    A(f"s_cmp_eq_u32 {s(sJ)}, 7", "s_cbranch_scc1 L_acu_ha")
    A("L_ha2:")
    srd(R0, P_WUV, 4 << 20)
    A(f"v_lshlrev_b32 v13, 17, v12", f"v_lshl_add_u32 v13, v11, 4, v13",
      f"s_lshl_b32 {s(sT1)}, {s(sJ)}, 19", f"s_lshl_b32 {s(sT2)}, {s(sH)}, 8", f"s_add_u32 {s(sT1)}, {s(sT1)}, {s(sT2)}")
    slice_loads(WU, R0, 13)
    A(f"v_lshrrev_b32 v14, 3, v0", f"v_lshlrev_b32 v15, 17, v14", f"v_and_b32 v16, 7, v0", f"v_lshl_add_u32 v15, v16, 4, v15",
      f"s_lshl_b32 {s(sT1)}, {s(sH)}, 10", f"s_lshl_b32 {s(sT0)}, {s(sJ)}, 7", f"s_add_u32 {s(sT1)}, {s(sT1)}, {s(sT0)}", f"s_add_u32 {s(sT1)}, {s(sT1)}, {PART}",
      f"v_lshlrev_b32 v16, 6, v14", f"s_lshl_b32 {s(sT2)}, {s(sH)}, 9", f"s_add_u32 {s(sT2)}, {s(sT2)}, {MLB}")
    if nopoll: flag_wait(FX, 1, 24, sleep=8)
    ML = 48
    poll([f"buffer_load_dwordx3 {v(ML+4*t,3)}, v16, {s(RWS,4)}, {s(sT2)} offen offset:{16*t} sc1" for t in range(4)], [[ML+4*t+2] for t in range(4)], sleep=psleep)
    stamp(13)
    CK = 128
    for t in range(4):
        A(f"buffer_load_dwordx4 {v(CK+4*t,4)}, v15, {s(RWS,4)}, {s(sT1)} offen sc1", f"s_add_u32 {s(sT1)}, {s(sT1)}, 32768")
    A(f"v_add_u32 v17, {LCW}, v27", f"v_lshlrev_b32 v18, 5, v12", f"v_add_u32 v18, {LCW}, v18")
    A(f"v_max3_f32 v20, {v(ML)}, {v(ML+4)}, {v(ML+8)}", f"v_max_f32 v20, v20, {v(ML+12)}",
      "v_max_f32_dpp v20, v20, v20 row_ror:8 row_mask:0xf bank_mask:0xf")
    xrow("v_max_f32", 20, 21)
    A(f"v_mul_f32 v20, {s(sC)}, v20")
    for t in range(4): A(f"v_fma_f32 {v(ML+4*t)}, {v(ML+4*t)}, {s(sC)}, -v20")
    for t in range(4): A(f"v_exp_f32 {v(ML+4*t)}, {v(ML+4*t)}")
    A(f"v_cvt_pk_bf16_f32 v22, {v(ML)}, {v(ML+4)}", f"v_cvt_pk_bf16_f32 v23, {v(ML+8)}, {v(ML+12)}",
      "v_lshlrev_b32 v30, 16, v22", "v_and_b32 v31, 0xffff0000, v22", "v_lshlrev_b32 v32, 16, v23", "v_and_b32 v33, 0xffff0000, v23",
      f"v_mul_f32 v20, v30, {v(ML+1)}", f"v_fmac_f32 v20, v31, {v(ML+5)}", f"v_fmac_f32 v20, v32, {v(ML+9)}", f"v_fmac_f32 v20, v33, {v(ML+13)}",
      "v_add_f32_dpp v20, v20, v20 row_ror:8 row_mask:0xf bank_mask:0xf")
    xrow("v_add_f32", 20, 21)
    A("v_rcp_f32 v20, v20")
    gemv(48, 22, CK, 4, 40, waits=lambda t: 3 - t)
    pair128(32, 48)
    A("v_mul_f32 v32, v32, v20", "v_mul_f32 v33, v33, v20", "v_cvt_pk_bf16_f32 v24, v32, v33",
      "s_mov_b32 exec_lo, 0x00ff00ff", "s_mov_b32 exec_hi, 0x00ff00ff", "ds_write_b32 v17, v24", "s_mov_b64 exec, -1",
      "ds_read_b128 v[32:35], v18", "ds_read_b128 v[36:39], v18 offset:16",
      f"s_lshl_b32 {s(sT0)}, {s(sH)}, 3", f"s_add_u32 {s(sT0)}, {s(sT0)}, {s(sJ)}", f"s_lshl_b32 {s(sT0)}, {s(sT0)}, 10", f"s_add_u32 {s(sT0)}, {s(sT0)}, {OMSG + 0x40000}",
      "s_waitcnt lgkmcnt(0)")
    gemv(48, 32, WU, 16, 40)
    pair256(32, 48)
    A(f"v_mov_b32 v34, 0", f"v_mov_b32 v35, {s(sTAG)}", f"buffer_store_dwordx4 v[32:35], {v(V16)}, {s(RWS,4)}, {s(sT0)} offen sc1", "s_nop 1")
    stamp(14)
    A("s_branch L_helper2")

    A("L_hb:")
    A("v_mov_b32 v28, 0", "v_mov_b32 v29, 0", "v_mov_b32 v30, 0", "v_mov_b32 v31, 0", f"ds_write_b128 {v(VFL)}, v[28:31]", "s_waitcnt lgkmcnt(0)")
    ws_shift()
    srd(R0, P_BWQ, 4 << 20); srd(R1, P_BX, 1024); srd(RWS, P_WS, WSSZ)
    A(f"s_load_dwordx2 {s(sTAG,2)}, {s(P_WS,2)}, {EPOCH}")
    A("s_barrier")
    A(f"s_cmp_eq_u32 {s(sJ)}, 0", "s_cbranch_scc0 L_noinit",
      f"s_add_u32 {s(sT0)}, {s(sT2)}, {QCNT}", f"v_mov_b32 v29, {28*ND0}", "s_mov_b64 exec, 1",
      f"buffer_store_dword v29, v28, {s(RWS,4)}, {s(sT0)} offen sc1", "s_mov_b64 exec, -1", "L_noinit:")
    if nowq: A(f"s_mov_b32 {s(R0+2)}, 0")
    if nowq == 2: A(f"s_mov_b32 {s(R1+2)}, 0")
    x_loads(); slice_loads(WSL, R0, 13)
    q_partial(0, 0)
    if abl < 1: A(f"s_cmp_eq_u32 {s(sJ)}, 7", "s_cbranch_scc1 L_acu_hb")
    A("L_hb2:")
    if abl == 4: A("s_sleep 64", "s_sleep 64")
    if abl != 3: gather_q(LQB)
    else: A("s_sleep 64")
    flag_add(FQ, 24)
    stamp(2)
    A("s_branch L_helper2")

    A("L_nothelper:")
    A(f"s_cmp_lt_u32 {s(sW)}, 4", "s_cbranch_scc1 L_w03")
    A(f"s_cmp_eq_u32 {s(sW)}, {9 if nopf else 6}", "s_cbranch_scc0 L_nopf")
    A(f"s_getpc_b64 {s(sM0,2)}", "L_pc:", f"s_sub_u32 {s(sM0)}, {s(sM0)}, L_pc-{NAME}_kernel", f"s_subb_u32 {s(sM0+1)}, {s(sM0+1)}, 0")
    A(f"s_and_b32 {s(sT0)}, {s(sH)}, 3", f"s_lshl_b32 {s(sT0)}, {s(sT0)}, 13", f"v_lshlrev_b32 v13, 7, v0", f"v_add_u32 v13, {s(sT0)}, v13",
      f"v_min_u32 v13, L_codeend-{NAME}_kernel-4, v13", f"global_load_dword v31, v13, {s(sM0,2)}")
    A("L_nopf:")
    A(f"s_cmp_eq_u32 {s(sJ)}, 7", "s_cbranch_scc1 L_acu")
    A("s_barrier", "s_waitcnt lgkmcnt(0)")
    if diag: A("s_sleep 127", "s_sleep 127", "s_sleep 127", "s_sleep 127", "s_sleep 127", "s_sleep 127", "s_sleep 127", "s_sleep 127", "s_sleep 127")
    A("s_branch L_fin")
    A("L_w03:")
    A(f"s_cmp_eq_u32 {s(sJ)}, 7", "s_cbranch_scc1 L_acu")

    if pattern == 0:
        A(f"s_mul_i32 {s(sT0)}, {s(sW)}, 7", f"s_add_u32 {s(sT0)}, {s(sT0)}, {s(sJ)}")
    elif pattern == 1:
        A(f"s_lshl_b32 {s(sT0)}, {s(sJ)}, 2", f"s_add_u32 {s(sT0)}, {s(sT0)}, {s(sW)}")
    def item_addr():
        A(f"s_add_u32 {s(sOFF)}, {s(sCUR)}, {s(sROT)}")
        if PERM == 1:
            A(f"s_and_b32 {s(sT0)}, {s(sOFF)}, 7", f"s_lshl_b32 {s(sT0)}, {s(sT0)}, 6", f"s_bfe_u32 {s(sOFF)}, {s(sOFF)}, {3 | (6 << 16)}", f"s_add_u32 {s(sOFF)}, {s(sOFF)}, {s(sT0)}")
        elif PERM == 2:
            A(f"s_and_b32 {s(sT0)}, {s(sOFF)}, 3", f"s_lshl_b32 {s(sT0)}, {s(sT0)}, 3", f"s_bfe_u32 {s(sT1)}, {s(sOFF)}, {2 | (3 << 16)}", f"s_add_u32 {s(sT0)}, {s(sT0)}, {s(sT1)}",
              f"s_and_b32 {s(sOFF)}, {s(sOFF)}, 0x1e0", f"s_add_u32 {s(sOFF)}, {s(sOFF)}, {s(sT0)}")
        else: A(f"s_and_b32 {s(sOFF)}, {s(sOFF)}, 511")
        A(f"s_lshl_b32 {s(sOFF)}, {s(sOFF)}, 12", f"s_add_u32 {s(sOFF)}, {s(sOFF)}, {s(sHB)}")
    A(f"s_mov_b32 {s(sCUR)}, {s(sT0)}", f"s_lshl_b32 {s(sHB)}, {s(sH)}, 21", f"s_mul_i32 {s(sROT)}, {s(sH)}, {ROT}")
    item_addr()
    def stream_setup():
        A(f"v_lshl_add_u32 {v(VK)}, {v(VK)}, 8, {v(VD)}")
        if kplain: A(f"v_mov_b32 {v(VK)}, {v(V16)}")
        srd(R0, P_K, 64 << 20); srd(R1, P_V, 64 << 20)
        A(f"s_lshl_b32 {s(sT0)}, {s(sH)}, 8", f"s_add_u32 {s(sT0)}, {s(sT0)}, {QCNT}", f"s_add_u32 {s(sQP)}, {s(P_WS)}, {s(sT0)}", f"s_addc_u32 {s(sQP+1)}, {s(P_WS+1)}, 0")
    A("s_waitcnt lgkmcnt(0)")
    ws_shift()
    stream_setup()
    A("s_barrier")
    Q, ACC, S_, M_, L_ = 12, 28, 32, 36, 37
    TT, UU, AL, MC, PP, PK, MK = 38, 39, 40, 41, 42, 46, 48
    NL = 2 if T <= 8 else 3
    LOOP0 = ND0 - 1
    def slot(i):
        if i <= LOOP0: return i % 6
        return (LOOP0 + (i - LOOP0) % NL) % 6
    slotK = lambda i: 64 + 32*slot(i)
    slotV = lambda i: 64 + 32*slot(i) + 16
    st = dict(issued=0, landed=0)
    def grab():
        if noatom:
            A(f"s_add_u32 {s(sNXT)}, {s(sCUR)}, 28"); return
        A(f"s_mov_b32 {s(sNXT)}, 1", f"s_atomic_add {s(sNXT)}, {s(sQP,2)}, 0 glc")
    def take():
        lab[0] += 1
        A("s_waitcnt lgkmcnt(0)", f"s_mov_b32 {s(sCUR)}, {s(sNXT)}")
        item_addr()
        A(f"s_cmp_lt_u32 {s(sCUR)}, 512", f"s_cbranch_scc1 L_take{lab[0]}", f"s_mov_b32 {s(sOFF)}, 0",
          f"s_mov_b32 {s(R0+2)}, 0", f"s_mov_b32 {s(R1+2)}, 0")
        flag_add(FX, UU)
        A(f"L_take{lab[0]}:")
    def issue(TH):
        idx = st['issued']; it, k = divmod(idx, 8)
        if k == 0 and it > 0:
            if it < ND0:
                A(f"s_add_u32 {s(sCUR)}, {s(sCUR)}, 28"); item_addr()
            else: take()
        if k == KA and it >= ND0 - 1: grab()
        if TH and idx - st['landed'] >= TH:
            A(f"s_waitcnt vmcnt({TH-1})"); st['landed'] = idx - (TH-1)
        if k < 4: A(f"buffer_load_dwordx4 {v(slotK(it)+4*k,4)}, {v(VK)}, {s(R0,4)}, {s(sOFF)} offen offset:{1024*k} {nt}")
        else:     A(f"buffer_load_dwordx4 {v(slotV(it)+4*(k-4),4)}, {v(V16)}, {s(R1,4)}, {s(sOFF)} offen offset:{1024*(k-4)} {nt}")
        st['issued'] += 1
    def needs(x):
        if st['landed'] < x:
            A(f"s_waitcnt vmcnt({st['issued']-x})"); st['landed'] = x
    def stream_init():
        selectors(13, 14)
        for r in range(4): A(f"v_mov_b32 {v(ACC+r)}, 0")
        A(f"v_mov_b32 {v(M_)}, {hex(NEGBIG)}", f"v_mov_b32 {v(L_)}, 0", f"v_add_u32 v11, {LQB}, {v(VD)}",
          f"s_lshl_b32 {s(sT0)}, {s(sW)}, 10", f"s_add_u32 {s(sT0)}, {s(sT0)}, {LOB}", f"v_add_u32 v16, {s(sT0)}, {v(V16)}")
    def read_q():
        flag_wait(FQ, 1, UU, sleep=1)
        A(f"ds_read_b128 {v(Q,4)}, v11", "s_waitcnt lgkmcnt(0)")
    assert ND0 - 1 > NPRE or (ND0 - 1 == NPRE)
    stamp(5, 4)
    for i in range(T0): issue(T0)
    stream_init()
    while st['issued'] < 8*NPRE:
        issue(T0)
        if st['issued'] == T0 + 1: stamp(6, 4)
        if st['issued'] in (12, 18, 24, 30): stamp(7 + (st['issued'] - 12)//6, 4)
    stamp(1)
    read_q()
    stamp(2)
    done_qk = [-1]; done_pv = [-1]
    def can_issue():
        it, k = divmod(st['issued'], 8)
        prev = max([x for x in range(it) if slot(x) == slot(it)], default=-1)
        return (done_qk[0] if k < 4 else done_pv[0]) >= prev
    def advance(x):
        n = 0
        while st['issued'] < x + T:
            assert can_issue(); issue(T); n += 1
        if n == 0:
            for _ in range(CU):
                if can_issue(): issue(T)
    def consume(i):
        advance(8*i + 4)
        needs(8*i + 4)
        for r in range(4): mfma(MK+4*r, slotK(i)+4*r, Q, "0")
        done_qk[0] = i
        if nocomp:
            for r in range(4):
                if r == 0 or st['issued'] < 8*i+5+r+T: advance(8*i + 5 + r)
                needs(8*i + 5 + r)
            done_pv[0] = i
            return
        rowdot(S_, MK, 4)
        A(f"v_max3_f32 {v(TT)}, {v(S_)}, {v(S_+1)}, {v(S_+2)}", f"v_max3_f32 {v(TT)}, {v(TT)}, {v(S_+3)}, {v(M_)}")
        xrow("v_max_f32", TT, UU)
        A(f"v_sub_f32 {v(AL)}, {v(M_)}, {v(TT)}", f"v_mul_f32 {v(MC)}, {s(sC)}, {v(TT)}", f"v_mul_f32 {v(AL)}, {s(sC)}, {v(AL)}",
          f"v_mov_b32 {v(M_)}, {v(TT)}", f"v_exp_f32 {v(AL)}, {v(AL)}")
        for r in range(4): A(f"v_fma_f32 {v(PP+r)}, {v(S_+r)}, {s(sC)}, -{v(MC)}")
        for r in range(4): A(f"v_exp_f32 {v(PP+r)}, {v(PP+r)}")
        for r in range(4): A(f"v_mul_f32 {v(ACC+r)}, {v(AL)}, {v(ACC+r)}")
        A(f"v_cvt_pk_bf16_f32 {v(PK)}, {v(PP)}, {v(PP+1)}", f"v_cvt_pk_bf16_f32 {v(PK+1)}, {v(PP+2)}, {v(PP+3)}")
        A(f"v_fma_f32 {v(L_)}, {v(L_)}, {v(AL)}, {v(PP)}", f"v_add_f32 {v(PP+1)}, {v(PP+1)}, {v(PP+2)}",
          f"v_add_f32 {v(L_)}, {v(L_)}, {v(PP+3)}", f"v_add_f32 {v(L_)}, {v(L_)}, {v(PP+1)}")
        for r in range(4): masked(MK+4*r, PK + (r >> 1), r & 1)
        for r in range(4):
            if r == 0 or st['issued'] < 8*i+5+r+T: advance(8*i + 5 + r)
            needs(8*i + 5 + r)
            mfma(ACC, MK+4*r, slotV(i)+4*r, ACC)
        done_pv[0] = i
    assert T <= 8, "loop exit test assumes one item of lookahead"
    for i in range(LOOP0):
        consume(i)
        if i in (6, 8, 10, 12): stamp(5 + (i-6)//2, 3)
    assert st['issued'] == 8*LOOP0 + T, (st, LOOP0)
    st['landed'] = 8*LOOP0
    A("L_loop:")
    for i in range(LOOP0, LOOP0 + NL):
        consume(i)
        A(f"s_cmp_lt_u32 {s(sCUR)}, 512", f"s_cbranch_scc0 L_sdone" if i < LOOP0 + NL - 1 else "s_cbranch_scc1 L_loop")
    A("L_sdone:")
    xrow("v_add_f32", L_, UU)
    A("s_nop 1")
    pair256(34, ACC)
    A("ds_write_b128 v16, v[34:37]")
    flag_add(FP, UU)
    stamp(4)
    A("s_branch L_fin")

    A("L_helper2:")
    def wo_loads():
        for t in range(16):
            if t % 4 == 0: A(f"s_mov_b32 {s(sT0)}, {1024*t}")
            A(f"buffer_load_dwordx4 {v(WSL+4*t,4)}, v13, {s(R4,4)}, {s(sT0)} offen offset:{1024*(t&3)} {nt}")
    A(f"v_lshrrev_b32 v14, 3, v0", f"v_lshlrev_b32 v13, 14, v14", f"v_and_b32 v15, 7, v0", f"v_lshl_add_u32 v13, v15, 4, v13",
      f"s_lshl_b32 {s(sT0)}, {s(sH)}, 17", f"s_lshl_b32 {s(sT2)}, {s(sJ)}, 7", f"s_add_u32 {s(sT0)}, {s(sT0)}, {s(sT2)}", f"v_add_u32 v13, {s(sT0)}, v13")
    A(f"s_lshl_b32 {s(sT0)}, {s(sAB)}, 8", f"s_add_u32 {s(sT0)}, {s(sT0)}, {LOTB}", f"v_lshl_add_u32 v14, v14, 5, {s(sT0)}", f"v_add_u32 v15, {s(sT0)}, v27")
    srd(R3, P_OUT, 2048)
    A(f"s_cmp_eq_u32 {s(sAB)}, 1")
    srd_sel(R4, P_AWO, P_BWO, 4 << 20)
    A(f"s_lshl_b32 {s(sT1)}, {s(sAB)}, 5", f"s_add_u32 {s(sT1)}, {s(sT1)}, {s(sH)}", f"s_lshl_b32 {s(sT1)}, {s(sT1)}, 13", f"s_add_u32 {s(sT1)}, {s(sT1)}, {OMSG}")
    if late_wo: flag_wait(FX, NX, 24, sleep=xsleep)
    stamp(3, 1)
    wo_loads()
    A(f"s_cmp_eq_u32 {s(sAB)}, 1", "s_cbranch_scc1 L_ha_tail")
    A(f"v_add_u32 v30, {LOB}, {v(V16)}", f"v_and_b32 v24, 1, v0", f"v_cmp_eq_u32 {s(sM0,2)}, 1, v24", f"v_mov_b32 v35, {s(sTAG)}",
      f"s_lshl_b32 {s(sT0)}, {s(sJ)}, 10", f"s_add_u32 {s(sT0)}, {s(sT0)}, {s(sT1)}")
    flag_wait(FP, 4, 24, sleep=0 if late_wo else 1)
    for w in range(4): A(f"ds_read_b128 {v(MSG+4*w,4)}, v30 offset:{1024*w}")
    stamp(4)
    A("s_waitcnt lgkmcnt(0)")
    A(f"v_max3_f32 v28, {v(MSG+2)}, {v(MSG+6)}, {v(MSG+10)}", f"v_max_f32 v28, v28, {v(MSG+14)}")
    for w in range(4): A(f"v_sub_f32 {v(MSG+4*w+2)}, {v(MSG+4*w+2)}, v28")
    for w in range(4): A(f"v_mul_f32 {v(MSG+4*w+2)}, {s(sC)}, {v(MSG+4*w+2)}")
    for w in range(4): A(f"v_exp_f32 {v(MSG+4*w+2)}, {v(MSG+4*w+2)}")
    A(f"v_mul_f32 v32, {v(MSG)}, {v(MSG+2)}", f"v_mul_f32 v33, {v(MSG+1)}, {v(MSG+2)}", f"v_mul_f32 v29, {v(MSG+3)}, {v(MSG+2)}")
    for w in range(1, 4):
        A(f"v_fmac_f32 v29, {v(MSG+4*w+3)}, {v(MSG+4*w+2)}", f"v_fmac_f32 v32, {v(MSG+4*w)}, {v(MSG+4*w+2)}", f"v_fmac_f32 v33, {v(MSG+4*w+1)}, {v(MSG+4*w+2)}")
    A(f"v_cndmask_b32 v34, v28, v29, {s(sM0,2)}",
      f"buffer_store_dwordx4 v[32:35], {v(V16)}, {s(RWS,4)}, {s(sT0)} offen sc1")
    stamp(5, 1)
    gather8_loads()
    stamp(6, 1)
    for jj in range(8): A(f"v_mov_b32_dpp {v(MSG+4*jj+3)}, {v(MSG+4*jj+2)} quad_perm:[0,0,2,2] row_mask:0xf bank_mask:0xf")
    for jj in range(8): A(f"v_mov_b32_dpp {v(MSG+4*jj+2)}, {v(MSG+4*jj+2)} quad_perm:[1,1,3,3] row_mask:0xf bank_mask:0xf")
    mj = lambda jj: v(MSG+4*jj+3)
    A(f"v_max3_f32 v28, {mj(0)}, {mj(1)}, {mj(2)}", f"v_max3_f32 v29, {mj(3)}, {mj(4)}, {mj(5)}", f"v_max3_f32 v28, v28, {mj(6)}, {mj(7)}", f"v_max_f32 v28, v28, v29",
      f"v_mul_f32 v28, {s(sC)}, v28")
    for jj in range(8): A(f"v_fma_f32 {mj(jj)}, {mj(jj)}, {s(sC)}, -v28")
    for jj in range(8): A(f"v_exp_f32 {mj(jj)}, {mj(jj)}")
    A(f"v_mul_f32 v29, {v(MSG+2)}, {mj(0)}", f"v_mul_f32 v32, {v(MSG)}, {mj(0)}", f"v_mul_f32 v33, {v(MSG+1)}, {mj(0)}")
    for jj in range(1, 8):
        A(f"v_fmac_f32 v29, {v(MSG+4*jj+2)}, {mj(jj)}", f"v_fmac_f32 v32, {v(MSG+4*jj)}, {mj(jj)}", f"v_fmac_f32 v33, {v(MSG+4*jj+1)}, {mj(jj)}")
    A(f"v_rcp_f32 v29, v29", f"v_mul_f32 v32, v32, v29", f"v_mul_f32 v33, v33, v29")
    A("s_branch L_tail_common")
    A("L_ha_tail:")
    gather8(32)
    stamp(6, 1)
    A("L_tail_common:")
    A(f"v_cvt_pk_bf16_f32 v24, v32, v33", f"ds_write_b32 v15, v24",
      f"ds_read_b128 {v(XR,4)}, v14", f"ds_read_b128 {v(XR+4,4)}, v14 offset:16")
    A(f"s_lshl_b32 {s(sT1)}, {s(sAB)}, 3", f"s_add_u32 {s(sT1)}, {s(sT1)}, {s(sJ)}", f"s_lshl_b32 {s(sT1)}, {s(sT1)}, 14", f"s_add_u32 {s(sT1)}, {s(sT1)}, {YMSG}",
      f"s_lshl_b32 {s(sT0)}, {s(sH)}, 9", f"s_add_u32 {s(sT0)}, {s(sT0)}, {s(sT1)}", f"v_lshlrev_b32 v37, 2, v27",
      f"v_and_b32 v36, 31, v0", f"v_lshlrev_b32 v36, 9, v36", f"s_lshl_b32 {s(sT2)}, {s(sH)}, 4", f"s_add_u32 {s(sT1)}, {s(sT1)}, {s(sT2)}",
      f"v_mov_b32 v34, {s(sTAG)}", f"s_mov_b32 {s(sBASE)}, -1", f"s_mov_b32 {s(sBASE+1)}, 0")
    A(f"s_xor_b32 {s(sT3)}, {s(sAB)}, 1", f"s_lshl_b32 {s(sT3)}, {s(sT3)}, 10", f"s_lshl_b32 {s(sT2)}, {s(sJ)}, 7", f"s_add_u32 {s(sT3)}, {s(sT3)}, {s(sT2)}",
      f"s_lshl_b32 {s(sT2)}, {s(sH)}, 2", f"s_add_u32 {s(sT3)}, {s(sT3)}, {s(sT2)}")
    A("s_waitcnt vmcnt(0) lgkmcnt(0)")
    gemv(28, XR, WSL, 16, 40)
    pair128(32, 28)
    A(f"s_mov_b32 exec_lo, 0x00ff00ff", f"s_mov_b32 exec_hi, 0x00ff00ff",
      f"buffer_store_dwordx3 v[32:34], v37, {s(RWS,4)}, {s(sT0)} offen sc1", f"s_mov_b64 exec, {s(sBASE,2)}")
    stamp(7, 1)
    poll([f"buffer_load_dwordx3 v[40:42], v36, {s(RWS,4)}, {s(sT1)} offen sc1"], [[42]], base=s(sBASE,2))
    stamp(8, 1)
    A("s_mov_b64 exec, -1")
    for k in (8, 4, 2, 1):
        for e in range(2): A(f"v_add_f32_dpp {v(40+e)}, {v(40+e)}, {v(40+e)} row_ror:{k} row_mask:0xf bank_mask:0xf")
    A("v_mov_b32 v24, v40", "v_mov_b32 v28, v41", "v_mov_b32 v29, 0", "v_permlane16_swap_b32 v40, v24", "v_permlane16_swap_b32 v41, v28",
      "v_add_f32 v40, v40, v24", "v_add_f32 v41, v41, v28",
      f"v_cvt_pk_bf16_f32 v24, v40, v41", "s_mov_b64 exec, 1",
      f"buffer_store_dword v24, v29, {s(R3,4)}, {s(sT3)} offen")
    A(f"s_cmp_lg_u32 s2, 0", "s_cbranch_scc1 L_noepoch", f"s_lshl_b32 {s(sT0)}, {s(sAB)}, 2",
      f"buffer_store_dword v34, v29, {s(RWS,4)}, {s(sT0)} offen offset:{EPOCH}", "L_noepoch:", "s_mov_b64 exec, -1")
    stamp(15)
    A("s_branch L_fin")

    ckr = {1: 64, 2: 96, 3: 32}
    def ckv_half(rho, hf, TH=0):
        A(f"s_add_u32 {s(sT0)}, {s(sOFF)}, {65536*rho + 4096*hf}")
        for x in range(4):
            if TH: A(f"s_waitcnt vmcnt({TH-1})")
            A(f"buffer_load_dwordx4 {v(ckr[rho]+16*hf+4*x,4)}, {v(V16)}, {s(R0,4)}, {s(sT0)} offen offset:{1024*x} {nt}")
    def ckv_loads(TA):
        srd(R0, P_CKV, 8 << 20)
        A(f"s_lshl_b32 {s(sOFF)}, {s(sH)}, 18", f"s_lshl_b32 {s(sT0)}, {s(sW)}, 13", f"s_add_u32 {s(sOFF)}, {s(sOFF)}, {s(sT0)}",
          f"s_mul_i32 {s(sSTR)}, {s(sW)}, {8*RS}", f"s_mov_b32 m0, {s(sSTR)}", f"s_mov_b32 {s(sT0)}, {s(sOFF)}")
        for x in range(8):
            if TA and x >= TA: A(f"s_waitcnt vmcnt({TA-1})")
            A(f"buffer_load_dwordx4 {v(V16)}, {s(R0,4)}, {s(sT0)} offen {nt} lds")
            if x < 7: A(f"s_add_u32 m0, m0, {RS}", f"s_addk_i32 {s(sT0)}, 1024")
        for rho in (1, 2):
            for hf in range(2): ckv_half(rho, hf, TA)
    A("L_acu_hb:")
    A("s_nop 1")
    ckv_loads(TAH)
    A(f"s_movk_i32 {s(sT0)}, {FLG1}", f"s_add_u32 {s(sTAG2)}, {s(sTAG2)}, 0x9e3779b9")
    poll([f"buffer_load_dwordx4 v[16:19], {v(V16)}, {s(RWS,4)}, {s(sT0)} offen sc1"], [[16, 17, 18, 19]], tag=sTAG2)
    stamp(5, 2)
    for x in range(32):
        if x % 4 == 0: A(f"s_mov_b32 {s(sT0)}, {QABS + 1024*x}")
        A(f"buffer_load_dwordx4 {v(128+4*x,4)}, {v(V16)}, {s(RWS,4)}, {s(sT0)} offen offset:{1024*(x&3)} sc1")
    A(f"v_add_u32 v13, {LB1}, {v(V16)}")
    for x in range(32):
        A(f"s_waitcnt vmcnt({31-x})", f"ds_write_b128 v13, {v(128+4*x,4)} offset:{RS*x}")
    A("s_branch L_acu_rest")
    A("L_acu_ha:")
    ckv_loads(TAH)
    A("s_branch L_acu_rest")
    A("L_acu:")
    A("s_waitcnt lgkmcnt(0)", "s_barrier")
    ws_shift()
    srd(RWS, P_WS, WSSZ)
    if abl >= 1: A(f"s_cmp_lt_u32 {s(sW)}, 4", "s_cbranch_scc1 L_acu_stream", "s_branch L_fin")
    ckv_loads(TA)
    A("L_acu_rest:")
    A("s_setprio 0")
    aQK, aTR, aMXw, aMX0, aMX1, aPw, aP0, aP1, aCW = 14, 16, 18, 19, 20, 21, 22, 23, 28
    sKT, sHT = sT1, sT2
    A(f"s_and_b32 {s(sKT)}, {s(sW)}, 3", f"s_lshr_b32 {s(sHT)}, {s(sW)}, 2", f"s_movk_i32 {s(sT3)}, {RS}",
      f"v_mul_lo_u32 v24, v11, {s(sT3)}", f"v_lshl_add_u32 v24, v12, 4, v24",
      f"s_mul_i32 {s(sT0)}, {s(sKT)}, {16*RS}", f"v_add_u32 {v(aQK)}, {s(sT0)}, v24", f"v_add_u32 {v(aQK+1)}, {LB1}, {v(aQK)}",
      f"s_mul_i32 {s(sT0)}, {s(sHT)}, {16*RS}", f"s_add_u32 {s(sT0)}, {s(sT0)}, {LB1}", f"v_add_u32 v13, {s(sT0)}, v24",
      f"v_lshrrev_b32 v24, 2, v0", f"v_mul_lo_u32 v24, v24, {s(sT3)}", f"v_and_b32 v30, 3, v0", f"v_lshl_add_u32 v24, v30, 3, v24",
      f"s_lshl_b32 {s(sT0)}, {s(sW)}, 7", f"v_add_u32 {v(aTR)}, {s(sT0)}, v24", f"v_add_u32 {v(aTR+1)}, {LB1}, {v(aTR)}",
      f"s_lshl_b32 {s(sT0)}, {s(sHT)}, 8", f"v_lshl_add_u32 v24, v11, 4, {s(sT0)}", f"v_add_u32 {v(aMX0)}, {LMX}, v24",
      f"v_xor_b32 v24, 256, v24", f"v_add_u32 {v(aMX1)}, {LMX}, v24",
      f"s_lshl_b32 {s(sT0)}, {s(sKT)}, 2", f"v_add_u32 {v(aMXw)}, {s(sT0)}, {v(aMX0)}",
      f"s_lshl_b32 {s(sT0)}, {s(sHT)}, 10", f"v_add_u32 v24, {s(sT0)}, {v(V16)}", f"v_add_u32 {v(aP0)}, {LP}, v24",
      f"v_xor_b32 v24, 1024, v24", f"v_add_u32 {v(aP1)}, {LP}, v24",
      f"s_lshr_b32 {s(sT0)}, {s(sKT)}, 1", f"s_lshl_b32 {s(sT0)}, {s(sT0)}, 11", f"s_and_b32 {s(sT3)}, {s(sKT)}, 1", f"s_lshl_b32 {s(sT3)}, {s(sT3)}, 3",
      f"s_add_u32 {s(sT0)}, {s(sT0)}, {s(sT3)}", f"v_add_u32 {v(aPw)}, {s(sT0)}, {v(aP0)}",
      f"v_add_u32 {v(aCW)}, {s(sSTR)}, {v(V16)}", f"v_add_u32 {v(aCW+1)}, {LB1}, {v(aCW)}")
    A("s_waitcnt lgkmcnt(0)", "s_barrier")
    stamp(6, 2)
    QA, AC, ST = 128, 192, 224
    for ks in range(16): A(f"ds_read_b128 {v(QA+4*ks,4)}, v13 offset:{64*ks}")
    ckv_half(3, 0)
    def ck_write(rho):
        for x in range(8): A(f"ds_write_b128 {v(aCW+(rho&1))}, {v(ckr[rho]+4*x,4)} offset:{RS*x}")
    A(f"s_waitcnt vmcnt(12) lgkmcnt(0)", "s_barrier")
    ck_write(1)
    SS, MM, ALP, PO, MXR = 64, 68, 70, 72, 72
    ALP = 88; LL = 92; PT = 30
    for rho in range(4):
        bq = rho & 1
        stamp(7 + rho, 2)
        for ks in range(7): A(f"ds_read_b128 {v(ST+4*ks,4)}, {v(aQK+bq)} offset:{64*ks}")
        for ks in range(16):
            if ks + 7 < 16: A(f"ds_read_b128 {v(ST+4*((ks+7)&7),4)}, {v(aQK+bq)} offset:{64*(ks+7)}")
            A(f"s_waitcnt lgkmcnt({min(7, 15-ks)})")
            mfma(SS, ST+4*(ks & 7), QA+4*ks, "0" if ks == 0 else SS)
        if rho == 2:
            A("s_waitcnt vmcnt(0)"); ck_write(3)
        A(f"v_max3_f32 v24, {v(SS)}, {v(SS+1)}, {v(SS+2)}", f"v_max_f32 v24, v24, {v(SS+3)}")
        xrow("v_max_f32", 24, PT)
        A("s_mov_b64 exec, 0xffff", f"ds_write_b32 {v(aMXw)}, v24", "s_mov_b64 exec, -1", "s_waitcnt lgkmcnt(0)", "s_barrier")
        A(f"ds_read_b128 {v(MXR,4)}, {v(aMX0)}", f"ds_read_b128 {v(MXR+4,4)}, {v(aMX1)}")
        def tr_read(x):
            Tt, kap = x >> 1, x & 1
            b = ST + 4*x
            A(f"ds_read_b64_tr_b16 {v(b,2)}, {v(aTR+bq)} offset:{32*kap*RS + 32*Tt}", f"ds_read_b64_tr_b16 {v(b+2,2)}, {v(aTR+bq)} offset:{(32*kap+16)*RS + 32*Tt}")
        for x in range(4): tr_read(x)
        A("s_waitcnt lgkmcnt(8)")
        for u in range(2):
            b = MXR + 4*u
            A(f"v_max3_f32 {v(b)}, {v(b)}, {v(b+1)}, {v(b+2)}")
            if rho == 0: A(f"v_max_f32 {v(MM+u)}, {v(b)}, {v(b+3)}")
            else:
                A(f"v_max3_f32 {v(b)}, {v(b)}, {v(b+3)}, {v(MM+u)}", f"v_sub_f32 {v(ALP+2*u)}, {v(MM+u)}, {v(b)}", f"v_mov_b32 {v(MM+u)}, {v(b)}",
                  f"v_mul_f32 {v(ALP+2*u)}, {s(sC)}, {v(ALP+2*u)}", f"v_exp_f32 {v(ALP+2*u)}, {v(ALP+2*u)}")
        A(f"v_mul_f32 v24, {s(sC)}, {v(MM)}")
        for r in range(4): A(f"v_fma_f32 {v(SS+r)}, {v(SS+r)}, {s(sC)}, -v24")
        for r in range(4): A(f"v_exp_f32 {v(SS+r)}, {v(SS+r)}")
        A(f"v_cvt_pk_bf16_f32 {v(PT)}, {v(SS)}, {v(SS+1)}", f"v_cvt_pk_bf16_f32 {v(PT+1)}, {v(SS+2)}, {v(SS+3)}", f"ds_write_b64 {v(aPw)}, {v(PT,2)}")
        for x in range(4, 8): tr_read(x)
        A(f"v_add_f32 {v(SS)}, {v(SS)}, {v(SS+1)}", f"v_add_f32 {v(SS+2)}, {v(SS+2)}, {v(SS+3)}")
        if rho == 0: A(f"v_add_f32 {v(LL)}, {v(SS)}, {v(SS+2)}")
        else:
            A(f"v_fma_f32 {v(LL)}, {v(LL)}, {v(ALP)}, {v(SS)}", f"v_add_f32 {v(LL)}, {v(LL)}, {v(SS+2)}")
            for Tt in range(4):
                for u in range(2):
                    for r in (0, 2):
                        d = v(AC+8*Tt+4*u+r, 2)
                        A(f"v_pk_mul_f32 {d}, {d}, {v(ALP+2*u,2)} op_sel_hi:[1,0]")
        A("s_waitcnt lgkmcnt(0)", "s_barrier")
        for kap in range(2):
            for u in range(2): A(f"ds_read_b128 {v(PO+8*kap+4*u,4)}, {v(aP0+u)} offset:{2048*kap}")
        nw = 0
        if rho == 0:
            A(f"s_waitcnt vmcnt(4)"); ck_write(2); nw = 8
            ckv_half(3, 1)
        for kap in range(2):
            A(f"s_waitcnt lgkmcnt({nw + (2 if kap == 0 else 0)})")
            for Tt in range(4):
                for u in range(2):
                    d = AC+8*Tt+4*u
                    mfma(d, ST+4*(2*Tt+kap), PO+8*kap+4*u, "0" if (rho == 0 and kap == 0) else d)
    stamp(11)
    xrow("v_add_f32", LL, 24)
    A(f"s_movk_i32 {s(sT3)}, {RS}", f"v_mul_lo_u32 v24, v11, {s(sT3)}", f"v_lshl_add_u32 v24, v12, 3, v24", f"s_lshl_b32 {s(sT0)}, {s(sW)}, 7", f"v_add_u32 v24, {s(sT0)}, v24",
      f"s_mul_i32 {s(sT0)}, {s(sHT)}, {16*RS}", f"v_add_u32 v14, {s(sT0)}, v24", f"s_sub_u32 {s(sT0)}, {16*RS}, {s(sT0)}", f"v_add_u32 v15, {s(sT0)}, v24")
    A("s_mov_b64 exec, 0xffff", f"ds_write_b32 {v(aMXw)}, {v(LL)} offset:1024", "s_mov_b64 exec, -1")
    for Tt in range(4):
        for u in range(2):
            d = AC+8*Tt+4*u; o = 40 + 4*Tt + 2*u
            A(f"v_cvt_pk_bf16_f32 {v(o)}, {v(d)}, {v(d+1)}", f"v_cvt_pk_bf16_f32 {v(o+1)}, {v(d+2)}, {v(d+3)}", f"ds_write_b64 {v(14+u)}, {v(o,2)} offset:{32*Tt}")
    A(f"s_mul_i32 {s(sT0)}, {s(sW)}, {4*RS}", f"v_add_u32 v13, {s(sT0)}, {v(V16)}",
      f"s_lshl_b32 {s(sT1)}, {s(sH)}, 15", f"s_lshl_b32 {s(sT0)}, {s(sW)}, 12", f"s_add_u32 {s(sT1)}, {s(sT1)}, {s(sT0)}", f"s_add_u32 {s(sT1)}, {s(sT1)}, {PART}")
    A("s_waitcnt lgkmcnt(0)", "s_barrier")
    for x in range(4): A(f"ds_read_b128 {v(40+4*x,4)}, v13 offset:{RS*x}")
    for x in range(4): A(f"s_waitcnt lgkmcnt({3-x})", f"buffer_store_dwordx4 {v(40+4*x,4)}, {v(V16)}, {s(RWS,4)}, {s(sT1)} offen offset:{1024*x} sc1")
    A(f"v_and_b32 v24, 31, v0", f"v_lshlrev_b32 v30, 4, v24", f"v_add_u32 v30, {LLS}, v30", f"ds_read_b128 v[56:59], v30",
      f"v_and_b32 v20, 16, v0", f"v_cmp_eq_u32 vcc, 0, v20", f"v_cndmask_b32 v20, {v(MM)}, {v(MM+1)}, vcc",
      f"v_lshlrev_b32 v24, 9, v24", f"s_lshl_b32 {s(sT0)}, {s(sH)}, 4", f"s_add_u32 {s(sT0)}, {s(sT0)}, {MLB}", "s_waitcnt lgkmcnt(0)",
      "v_add_f32 v56, v56, v57", "v_add_f32 v58, v58, v59", "v_add_f32 v21, v56, v58")
    A("s_waitcnt vmcnt(0)", "s_barrier")
    stamp(12)
    A(f"s_cmp_ge_u32 {s(sW)}, 6", "s_cbranch_scc1 L_fin")
    A(f"s_cmp_lt_u32 {s(sW)}, 4", "s_cbranch_scc1 L_acu_stream")
    A("s_setprio 3")
    A(f"s_lshl_b32 {s(sT1)}, {s(sH)}, 13", f"s_add_u32 {s(sT1)}, {s(sT1)}, {QMSG}")
    A(f"s_cmp_eq_u32 {s(sW)}, 5", "s_cbranch_scc0 L_hb2")
    A(f"v_mov_b32 v22, {s(sTAG)}", "s_mov_b32 exec_hi, 0", f"buffer_store_dwordx3 v[20:22], v24, {s(RWS,4)}, {s(sT0)} offen sc1",
      "s_mov_b64 exec, -1", "s_nop 0", "s_branch L_ha2")
    A("L_acu_stream:")
    A(f"s_lshl_b32 {s(sHB)}, {s(sH)}, 21", f"s_mul_i32 {s(sROT)}, {s(sH)}, {ROT}")
    stream_setup()
    stream_init()
    read_q()
    if noatom: A(f"s_mov_b32 {s(sCUR)}, 512")
    grab()
    take()
    A(f"s_cmp_lt_u32 {s(sCUR)}, 512", "s_cbranch_scc0 L_sdone")
    st['issued'] = 8*LOOP0; st['landed'] = 8*LOOP0
    for n in range(T):
        idx = st['issued']; it, k = divmod(idx, 8)
        if k == KA: grab()
        if k < 4: A(f"buffer_load_dwordx4 {v(slotK(it)+4*k,4)}, {v(VK)}, {s(R0,4)}, {s(sOFF)} offen offset:{1024*k} {nt}")
        else:     A(f"buffer_load_dwordx4 {v(slotV(it)+4*(k-4),4)}, {v(V16)}, {s(R1,4)}, {s(sOFF)} offen offset:{1024*(k-4)} {nt}")
        st['issued'] += 1
    A("s_branch L_loop")

    A("L_fin:")
    if amp:
        wg, wv, k1, k2, md = amp
        A(f"s_cmp_eq_u32 s2, {wg}", "s_cbranch_scc0 L_end", f"s_cmp_eq_u32 {s(sW)}, {wv}", "s_cbranch_scc0 L_end",
          f"s_sub_u32 {s(sT0)}, {s(sTS+k2)}, {s(sTS+k1)}", f"s_min_u32 {s(sT0)}, {s(sT0)}, 10000", f"s_lshl_b32 {s(sT0)}, {s(sT0)}, 2", f"s_add_u32 {s(sT0)}, {s(sT0)}, 6000",
          "L_amp:", "s_memrealtime s[84:85]", "s_waitcnt lgkmcnt(0)", f"s_sub_u32 {s(sT1)}, s84, {s(sTS)}", f"s_cmp_lt_u32 {s(sT1)}, {s(sT0)}", "s_cbranch_scc1 L_amp")
    if diag:
        A("s_waitcnt lgkmcnt(0)")
        A(f"s_lshl_b32 {s(sT0)}, s2, 3", f"s_add_u32 {s(sT0)}, {s(sT0)}, {s(sW)}", f"s_mul_i32 {s(sT0)}, {s(sT0)}, {8*NTS}",
          f"s_add_u32 {s(sT0)}, {s(sT0)}, {TSOFF}", f"s_add_u32 {s(sM0)}, {s(P_WS)}, {s(sT0)}", f"s_addc_u32 {s(sM0+1)}, {s(P_WS+1)}, 0",
          "v_mov_b32 v2, 0", "s_mov_b64 exec, 1")
        for k in range(NTS):
            A(f"v_mov_b32 v4, {s(sTS+k)}", f"v_mov_b32 v5, 0", f"global_store_dwordx2 v2, v[4:5], {s(sM0,2)} offset:{8*k}", "s_nop 1")
    A("L_end:", "s_endpgm", "L_codeend:")
    body, nn = A.fix()
    out = [HEADER.rstrip(), f"; @launch grid=(256,1,1) block=(512,1,1) lds={LDS_TOTAL}"]
    if diag: out.append(f"; tsinfo 2048 {NTS}")
    out += ['.amdgcn_target "amdgcn-amd-amdhsa--gfx950"', ".text", f".globl {NAME}_kernel", ".p2align 8", f".type {NAME}_kernel,@function"]
    out += [("" if l.endswith(":") else "    ") + l for l in body]
    out += ['.section .rodata,"a"', ".p2align 6", f".amdhsa_kernel {NAME}_kernel", "  .amdhsa_next_free_vgpr 256", "  .amdhsa_next_free_sgpr 102",
            "  .amdhsa_accum_offset 256", "  .amdhsa_group_segment_fixed_size 0", "  .amdhsa_kernarg_size 112", "  .amdhsa_user_sgpr_count 2",
            "  .amdhsa_user_sgpr_kernarg_segment_ptr 1", "  .amdhsa_system_sgpr_workgroup_id_x 1", ".end_amdhsa_kernel"]
    return "\n".join(out) + "\n"

if __name__ == "__main__":
    kw = {}
    outf = sys.argv[1]
    for a in sys.argv[2:]:
        k, x = a.split("=")
        try: x = eval(x)
        except Exception: pass
        kw[k] = x
    open(outf, "w").write(gen(**kw))
```

```python
import struct, sys, math
from asmlib import Asm
NAME = "concat_heads__compressed_kv_cla__mha_block_cached__decode"
f2u = lambda x: struct.unpack('<I', struct.pack('<f', x))[0]

HEADER = """; Kernarg layout for this problem (112 bytes, ptrs only, base s[0:1]):
"""
EPOCH = 0x0
FLG1 = 0x1000
PCNT = 0x2000
MLB  = 0x4000
QABS = 0x8000
QCNT = 0x10000
QMSG = 0x20000
OMSG = 0x60000
YMSG = 0xA0000
PART = 0x100000
WSSZ = 0x200000
TSOFF = 0x0F000000
RS = 1056
LB0 = 0; LB1 = 64*RS; LP = 128*RS
LM = LP + 4096
LQB = LM; LQA = LM + 256; LOTB = LM + 512; LOTA = LM + 768
LFL = LM + 1024
LMX = LM + 2048; LLS = LM + 3072; LCW = LM + 4096
LOB = LM + 5120
LOM = LM + 1088
LDS_TOTAL = 163840
assert LOB + 4096 <= LDS_TOTAL
P_AX, P_CKV, P_AWQ, P_WUK, P_WUV, P_AWO, P_BX, P_K, P_V, P_BWQ, P_BWO, P_OUT, P_DBG, P_WS = range(4, 32, 2)
sW, sH, sJ = 3, 32, 33
sTAG, sTAG2 = 34, 35
R0, R1, RWS, R3, R4 = 36, 40, 44, 48, 52
sT0, sT1, sT2, sT3 = 56, 57, 58, 59
sC, sOFF, sSTR, sSPIN = 60, 61, 62, 63
sM0 = 64
sBASE = 66
sMK = 68
sK0 = 76
sPP = 80
sQP, sNXT, sCUR, sHB, sROT = 68, 70, 71, 72, 73
sAB = 28
sTS = 86
NTS = 16
SPINMAX = 200000
NEGBIG = f2u(-3.0e38)

def v(a, n=1): return f"v{a}" if n == 1 else f"v[{a}:{a+n-1}]"
def s(a, n=1): return f"s{a}" if n == 1 else f"s[{a}:{a+n-1}]"

def gen(T=6, T0=None, NPRE=5, ND0=8, CU=1, KA=0, NX=4, diag=False, late_wo=True, nt="nt", psleep=8, TA=4, TAH=8, PERM=0,
        xsleep=2, nopf=1, amp=None, samp0=10, qsleep=0, KF=104, KAF=0, DB=3, DF=3, stag=5, outf="", NXA=4):
    A = Asm()
    T0 = T0 or T
    def stamp(k, mode=None):
        if amp:
            if k in amp[2:4] and (mode is None or mode == amp[4]):
                A(f"s_memrealtime s[84:85]", "s_waitcnt lgkmcnt(0)", f"s_mov_b32 {s(sTS+k)}, s84")
            return
        if diag and (mode is None or mode == diag):
            A(f"s_memrealtime s[84:85]", "s_waitcnt lgkmcnt(0)", f"s_mov_b32 {s(sTS+k)}, s84")
    def srd(r, p, size):
        A(f"s_mov_b32 {s(r)}, {s(p)}", f"s_mov_b32 {s(r+1)}, {s(p+1)}", f"s_mov_b32 {s(r+2)}, {hex(size)}", f"s_mov_b32 {s(r+3)}, 0x20000")
    def srd_sel(r, pa, pb, size):
        A(f"s_cselect_b32 {s(r)}, {s(pa)}, {s(pb)}", f"s_cselect_b32 {s(r+1)}, {s(pa+1)}, {s(pb+1)}",
          f"s_mov_b32 {s(r+2)}, {hex(size)}", f"s_mov_b32 {s(r+3)}, 0x20000")
    SEL = 1
    def selectors(t0, t1):
        A(f"v_and_b32 {v(t0)}, 1, v0", f"v_cmp_eq_u32 vcc, 1, {v(t0)}")
        for p in range(2):
            lo = 0x0C0C0000 | ((2*p+1) << 8) | (2*p); hi = ((2*p+1) << 24) | ((2*p) << 16) | 0x0C0C
            A(f"v_mov_b32 {v(t1+p)}, {hex(lo)}", f"v_mov_b32 {v(SEL)}, {hex(hi)}", f"v_cndmask_b32 {v(t1+p)}, {v(t1+p)}, {v(SEL)}, vcc")
        A(f"v_bfe_u32 {v(t0)}, v0, 1, 2")
        for r in range(4):
            A(f"v_cmp_eq_u32 vcc, {r}, {v(t0)}")
            for p in range(2): A(f"v_mov_b32 {v(SEL+2*r+p)}, 0x0c0c0c0c")
            for p in range(2): A(f"v_cndmask_b32 {v(SEL+2*r+p)}, {v(SEL+2*r+p)}, {v(t1+p)}, vcc")
    def masked(dst, src, p):
        for r in range(4): A(f"v_perm_b32 {v(dst+r)}, {v(src)}, {v(src)}, {v(SEL+2*r+p)}")
    def mfma(d, a, b, c):
        A(f"v_mfma_f32_16x16x32_bf16 {v(d,4)}, {v(a,4)}, {v(b,4)}, {c if isinstance(c,str) else v(c,4)}")
    def gemv(acc, X, W, n, tmp, waits=None):
        masked(tmp, X, 0)
        for t in range(n):
            if t + 1 < n: masked(tmp + 4*((t+1) & 1), X + ((t+1) >> 1), (t+1) & 1)
            if waits: A(f"s_waitcnt vmcnt({waits(t)})")
            mfma(acc, tmp + 4*(t & 1), W + 4*t, "0" if t == 0 else acc)
    def pair256(dst, acc):
        A(f"v_cmp_gt_u32 vcc, 32, v0", f"v_cndmask_b32 {v(dst)}, {v(acc+2)}, {v(acc)}, vcc", f"v_cndmask_b32 {v(dst+1)}, {v(acc+3)}, {v(acc+1)}, vcc")
    def pair128(dst, acc):
        for r in range(4): A(f"v_mov_b32_dpp {v(acc+r)}, {v(acc+r)} row_ror:8 row_mask:0xc bank_mask:0xf")
        A(f"v_permlane32_swap_b32 {v(acc)}, {v(acc+2)}", f"v_permlane32_swap_b32 {v(acc+1)}, {v(acc+3)}")
        A(f"v_add_f32 {v(dst)}, {v(acc)}, {v(acc+2)}", f"v_add_f32 {v(dst+1)}, {v(acc+1)}, {v(acc+3)}")
    def pairidx4(dst, t):
        A(f"v_lshlrev_b32 {v(dst)}, 4, v11", f"v_bfe_u32 {v(t)}, v0, 4, 1",
          f"v_lshl_add_u32 {v(dst)}, {v(t)}, 3, {v(dst)}", f"v_lshrrev_b32 {v(t)}, 5, v0", f"v_lshl_add_u32 {v(dst)}, {v(t)}, 2, {v(dst)}")
    def xrow(op, x, t, rows=(32, 16)):
        for k in rows:
            A(f"v_mov_b32 {v(t)}, {v(x)}", f"v_permlane{k}_swap_b32 {v(x)}, {v(t)}", f"{op} {v(x)}, {v(x)}, {v(t)}")
    def rowdot(dst, D, n):
        for b in range(4):
            for r in range(n):
                if b == 0: A(f"v_mov_b32_dpp {v(dst+r)}, {v(D+4*r)} quad_perm:[0,0,0,0] row_mask:0xf bank_mask:0xf")
                else: A(f"v_add_f32_dpp {v(dst+r)}, {v(D+4*r+b)}, {v(dst+r)} quad_perm:[{b},{b},{b},{b}] row_mask:0xf bank_mask:0xf")
    lab = [0]
    def poll(loads, tagregs, base="-1", sleep=0, tag=sTAG):
        lab[0] += 1; L = f"L_poll{lab[0]}"
        n = len(loads)
        mk = lambda k: s(sMK+2*k, 2)
        A(f"s_mov_b32 {s(sSPIN)}, 0")
        for k in range(n): A(loads[k])
        A(f"{L}:", "s_waitcnt vmcnt(0)")
        for k in range(n):
            t = tagregs[k]
            A(f"v_cmp_ne_u32 {mk(k)}, {s(tag)}, {v(t[0])}")
            for x in t[1:]: A(f"v_cmp_ne_u32 vcc, {s(tag)}, {v(x)}", f"s_or_b64 {mk(k)}, {mk(k)}, vcc")
        if n == 1: A(f"s_cmp_eq_u64 {mk(0)}, 0", f"s_cbranch_scc1 {L}_ok")
        else:
            A(f"s_or_b64 vcc, {mk(0)}, {mk(1)}")
            for k in range(2, n): A(f"s_or_b64 vcc, vcc, {mk(k)}")
            A(f"s_cbranch_scc0 {L}_ok")
        if sleep: A(f"s_sleep {sleep}")
        for k in range(n): A(f"s_mov_b64 exec, {mk(k)}", loads[k])
        A(f"s_mov_b64 exec, {base}", f"s_add_u32 {s(sSPIN)}, {s(sSPIN)}, 1", f"s_cmp_lt_u32 {s(sSPIN)}, {SPINMAX}", f"s_cbranch_scc1 {L}",
          "s_waitcnt vmcnt(0)", f"{L}_ok:")
    def ppoll(load, n, sets, F, D):
        lab[0] += 1; L = f"L_pp{lab[0]}"
        mk = lambda k: s(sMK+2*k, 2)
        A(f"s_mov_b32 {s(sSPIN)}, 0")
        for k in range(n): A(f"s_mov_b64 {mk(k)}, -1")
        for d in range(D):
            if d and stag: A(f"s_sleep {stag}")
            for k in range(n): A(load(k, sets + 4*(n*d + k)))
        A(f"{L}:")
        for d in range(D):
            A(f"s_waitcnt vmcnt({n*(D-1)})")
            for k in range(n):
                r = sets + 4*(n*d + k)
                A(f"v_cmp_eq_u32 vcc, {s(sTAG)}, {v(r+3)}", f"s_andn2_b64 {mk(k)}, {mk(k)}, vcc")
                for e in range(3): A(f"v_cndmask_b32 {v(F+4*k+e)}, {v(F+4*k+e)}, {v(r+e)}, vcc")
            if n > 1:
                A(f"s_or_b64 vcc, {mk(0)}, {mk(1)}")
                for k in range(2, n): A(f"s_or_b64 vcc, vcc, {mk(k)}")
            A(f"s_cbranch_scc0 {L}_ok")
            for k in range(n): A(f"s_mov_b64 exec, {mk(k)}", load(k, sets + 4*(n*d + k)))
            A("s_mov_b64 exec, -1")
        A(f"s_add_u32 {s(sSPIN)}, {s(sSPIN)}, 1", f"s_cmp_lt_u32 {s(sSPIN)}, {SPINMAX}", f"s_cbranch_scc1 {L}", f"{L}_ok:")
    def pack_consts():
        A(f"s_mov_b32 {s(sK0)}, 0x07060501", f"s_mov_b32 {s(sK0+1)}, 0x07060502", f"s_mov_b32 {s(sK0+2)}, 0x07060503", f"s_mov_b32 {s(sK0+3)}, 0x0c04000c")
    def pack24(dst, x):
        for e in range(3): A(f"v_perm_b32 {v(dst+e)}, {v(x+e)}, {v(x+3)}, {s(sK0+e)}")
    def unpack24(rs):
        for r in rs: A(f"v_perm_b32 {v(r+3)}, {v(r+1)}, {v(r)}, {s(sK0+3)}")
        for r in rs: A(f"v_lshl_or_b32 {v(r+3)}, {v(r+2)}, 24, {v(r+3)}")
    VFL = 25
    def flag_wait(off, n, tmp, sleep=0):
        lab[0] += 1; L = f"L_flag{lab[0]}"
        A(f"s_mov_b32 {s(sSPIN)}, 0", f"{L}:", f"ds_read_b32 {v(tmp)}, {v(VFL)} offset:{off}", "s_waitcnt lgkmcnt(0)",
          f"v_cmp_gt_u32 vcc, {n}, {v(tmp)}", f"s_add_u32 {s(sSPIN)}, {s(sSPIN)}, 1", f"s_cbranch_vccz {L}_ok")
        if sleep: A(f"s_sleep {sleep}")
        A(f"s_cmp_lt_u32 {s(sSPIN)}, {SPINMAX*10}", f"s_cbranch_scc1 {L}", f"{L}_ok:")
    def flag_add(off, tmp):
        A(f"v_mov_b32 {v(tmp)}, 1", "s_mov_b64 exec, 1", f"ds_add_u32 {v(VFL)}, {v(tmp)} offset:{off}", "s_mov_b64 exec, -1")
    FQ, FX, FP = 0, 4, 8

    A(f"{NAME}_kernel:")
    if amp:
        A(f"s_memrealtime s[84:85]", "s_waitcnt lgkmcnt(0)", f"s_mov_b32 {s(sTS)}, s84")
    if diag:
        A(f"s_memrealtime s[84:85]")
        for k in range(1, NTS): A(f"s_mov_b32 {s(sTS+k)}, 0")
        A("s_waitcnt lgkmcnt(0)", f"s_mov_b32 {s(sTS)}, s84")
    A("s_cmp_ge_u32 s2, 256", "s_cbranch_scc1 L_end",
      "s_load_dwordx16 s[4:19], s[0:1], 0", "s_load_dwordx8 s[20:27], s[0:1], 64", "s_load_dwordx2 s[30:31], s[0:1], 104",
      "v_lshrrev_b32 v1, 6, v0", "v_and_b32 v0, 63, v0", f"v_readfirstlane_b32 {s(sW)}, v1",
      f"s_lshr_b32 {s(sH)}, s2, 3", f"s_add_u32 {s(sJ)}, s2, {s(sH)}", f"s_and_b32 {s(sJ)}, {s(sJ)}, 7",
      f"s_mov_b32 {s(sC)}, {hex(f2u(math.log2(math.e)/math.sqrt(128)))}")
    VK, VD, V16 = 9, 10, 26
    A(f"v_and_b32 v11, 15, v0", f"v_lshrrev_b32 v12, 4, v0", f"v_lshlrev_b32 {v(V16)}, 4, v0", f"v_mov_b32 {v(VFL)}, {LFL}",
      f"v_and_b32 {v(VD)}, 3, v0", f"v_lshlrev_b32 {v(VD)}, 4, {v(VD)}", f"v_lshl_add_u32 {v(VD)}, v12, 6, {v(VD)}", f"v_bfe_u32 {v(VK)}, v0, 2, 2")
    A(f"s_sub_u32 {s(sAB)}, {s(sW)}, 4", f"s_cmp_ge_u32 {s(sAB)}, 2", "s_cbranch_scc1 L_nothelper")

    WSL = 128
    XR = 16
    WU = 64
    MSG = 192
    A("s_setprio 3")
    A(f"v_lshlrev_b32 v13, 17, v12", f"v_lshl_add_u32 v13, v11, 4, v13",
      f"s_lshl_b32 {s(sT0)}, {s(sJ)}, 7", f"v_lshl_add_u32 v14, v12, 5, {s(sT0)}",
      f"s_lshl_b32 {s(sT1)}, {s(sJ)}, 19", f"s_lshl_b32 {s(sT2)}, {s(sH)}, 8", f"s_add_u32 {s(sT1)}, {s(sT1)}, {s(sT2)}")
    def slice_loads(dst, R, voff):
        A(f"s_mov_b32 {s(sT0)}, {s(sT1)}")
        for t in range(16):
            A(f"buffer_load_dwordx4 {v(dst+4*t,4)}, {v(voff)}, {s(R,4)}, {s(sT0)} offen {nt}")
            if t < 15: A(f"s_addk_i32 {s(sT0)}, 8192")
    def msgstore():
        A("s_mov_b32 exec_hi, 0", f"buffer_store_dwordx4 v[32:35], {v(V16)}, {s(RWS,4)}, {s(sT0)} offen sc1", "s_mov_b64 exec, -1")
    def x_loads():
        A(f"buffer_load_dwordx4 {v(XR,4)}, v14, {s(R1,4)}, 0 offen", f"buffer_load_dwordx4 {v(XR+4,4)}, v14, {s(R1,4)}, 0 offen offset:16")
    def q_partial(ab, extra):
        selectors(24, 28)
        pairidx4(27, 24)
        pack_consts()
        A(f"s_lshl_b32 {s(sT1)}, {s(sH)}, 12", f"s_add_u32 {s(sT1)}, {s(sT1)}, {QMSG + ab*0x20000}",
          f"s_lshl_b32 {s(sT0)}, {s(sJ)}, 9", f"s_add_u32 {s(sT0)}, {s(sT0)}, {s(sT1)}")
        A(f"s_waitcnt vmcnt({16+extra})")
        gemv(28, XR, WSL, 16, 40, waits=lambda t: 15 - t + extra)
        A("s_waitcnt lgkmcnt(0)", f"s_add_u32 {s(sTAG)}, {s(sTAG)}, 0x9e3779b9", f"v_mov_b32 v35, {s(sTAG)}")
        pack24(32, 28)
        msgstore()
        stamp(1)
    msgload = lambda u, r: f"buffer_load_dwordx4 {v(r,4)}, {v(V16)}, {s(RWS,4)}, {s(sT1)} offen offset:{1024*u} sc1"
    def gather8(d):
        poll([msgload(u, MSG+4*u) for u in range(4)], [[MSG+4*u+3] for u in range(4)])
        unpack24([MSG+4*u for u in range(4)])
        for u in (0, 2):
            for e in range(4): A(f"v_add_f32 {v(MSG+4*u+e)}, {v(MSG+4*u+e)}, {v(MSG+4*u+4+e)}")
        for e in range(4): A(f"v_add_f32 {v(MSG+e)}, {v(MSG+e)}, {v(MSG+8+e)}")
        A(f"v_permlane32_swap_b32 {v(MSG)}, {v(MSG+2)}", f"v_permlane32_swap_b32 {v(MSG+1)}, {v(MSG+3)}",
          f"v_add_f32 {v(d)}, {v(MSG)}, {v(MSG+2)}", f"v_add_f32 {v(d+1)}, {v(MSG+1)}, {v(MSG+3)}")
    def gather_q(ldsoff):
        gather8(32)
        A(f"v_cvt_pk_bf16_f32 v24, v32, v33", f"v_add_u32 v15, {ldsoff}, v27", f"ds_write_b32 v15, v24")
    A(f"s_cmp_eq_u32 {s(sAB)}, 0", "s_cbranch_scc1 L_hb")

    A(f"v_lshl_add_u32 v15, {v(VK)}, 17, {v(VD)}", "s_waitcnt lgkmcnt(0)")
    srd(R0, P_AWQ, 4 << 20); srd(R1, P_AX, 1024)
    x_loads(); slice_loads(WSL, R0, 13)
    srd(R0, P_WUK, 4 << 20)
    A(f"s_load_dword {s(sTAG)}, {s(P_WS,2)}, {EPOCH+4}")
    slice_loads(WU, R0, 15)
    A("s_barrier")
    srd(RWS, P_WS, WSSZ)
    q_partial(1, 16)
    A(f"s_cmp_eq_u32 {s(sJ)}, 0", "s_cbranch_scc0 L_noinit2", f"s_lshl_b32 {s(sT0)}, {s(sH)}, 8", f"s_add_u32 {s(sT0)}, {s(sT0)}, {PCNT}",
      "s_mov_b64 exec, 1", f"buffer_store_dword v35, {v(V16)}, {s(RWS,4)}, {s(sT0)} offen sc1", "s_mov_b64 exec, -1", "L_noinit2:")
    gather_q(LQA)
    stamp(2)
    A(f"v_add_u32 v15, {LQA}, {v(VD)}", f"ds_read_b128 v[16:19], v15")
    A(f"v_and_b32 v14, 1, v0", f"v_cmp_eq_u32 {s(sM0,2)}, 1, v14", f"v_lshlrev_b32 v14, 4, v14", f"v_lshl_add_u32 v14, v12, 5, v14",
      f"s_lshl_b32 {s(sT0)}, {s(sH)}, 3", f"s_add_u32 {s(sT0)}, {s(sT0)}, {s(sJ)}", f"s_lshl_b32 {s(sT1)}, {s(sT0)}, 2", f"s_add_u32 {s(sT1)}, {s(sT1)}, {FLG1}",
      f"s_lshl_b32 {s(sT0)}, {s(sT0)}, 7", f"s_add_u32 {s(sT0)}, {s(sT0)}, {QABS}", "s_waitcnt lgkmcnt(0)")
    DD, QR = 128, 30
    for t in range(16): mfma(DD+4*t, WU+4*t, 16, "0")
    rowdot(QR, DD, 16)
    for t in range(8): A(f"v_cvt_pk_bf16_f32 {v(46+t)}, {v(QR+2*t)}, {v(QR+2*t+1)}")
    for t in range(4): A(f"v_cndmask_b32 {v(46+t)}, {v(46+t)}, {v(50+t)}, {s(sM0,2)}")
    A("s_mov_b32 exec_lo, 0x00030003", "s_mov_b32 exec_hi, 0x00030003",
      f"buffer_store_dwordx4 v[46:49], v14, {s(RWS,4)}, {s(sT0)} offen sc1", "s_mov_b64 exec, -1",
      f"v_mov_b32 v15, {s(sTAG)}", "v_mov_b32 v24, 0", "s_mov_b64 exec, 1", "s_waitcnt vmcnt(0)",
      f"buffer_store_dword v15, v24, {s(RWS,4)}, {s(sT1)} offen sc1", "s_mov_b64 exec, -1")
    stamp(3, 2)
    A(f"s_cmp_eq_u32 {s(sJ)}, 7", "s_cbranch_scc1 L_acu_ha")
    A("L_ha2:")
    srd(R0, P_WUV, 4 << 20)
    A(f"v_lshlrev_b32 v13, 17, v12", f"v_lshl_add_u32 v13, v11, 4, v13",
      f"s_lshl_b32 {s(sT1)}, {s(sJ)}, 19", f"s_lshl_b32 {s(sT2)}, {s(sH)}, 8", f"s_add_u32 {s(sT1)}, {s(sT1)}, {s(sT2)}")
    slice_loads(WU, R0, 13)
    A(f"v_lshrrev_b32 v14, 3, v0", f"v_lshlrev_b32 v15, 17, v14", f"v_and_b32 v16, 7, v0", f"v_lshl_add_u32 v15, v16, 4, v15",
      f"s_lshl_b32 {s(sT1)}, {s(sH)}, 10", f"s_lshl_b32 {s(sT0)}, {s(sJ)}, 7", f"s_add_u32 {s(sT1)}, {s(sT1)}, {s(sT0)}", f"s_add_u32 {s(sT1)}, {s(sT1)}, {PART}",
      f"v_lshlrev_b32 v16, 5, v14", f"s_lshl_b32 {s(sT2)}, {s(sH)}, 8", f"s_add_u32 {s(sT0)}, {s(sT2)}, {PCNT}", f"s_add_u32 {s(sT2)}, {s(sT2)}, {MLB}",
      f"s_add_u32 {s(sPP)}, {s(P_WS)}, {s(sT0)}", f"s_addc_u32 {s(sPP+1)}, {s(P_WS+1)}, 0", f"s_add_u32 {s(sT3)}, {s(sTAG)}, 32",
      f"s_mov_b32 {s(sSPIN)}, 0", "L_pcnt:", f"s_mov_b32 {s(sT0)}, 0", f"s_atomic_add {s(sT0)}, {s(sPP,2)}, 0 glc", "s_waitcnt lgkmcnt(0)",
      f"s_cmp_eq_u32 {s(sT0)}, {s(sT3)}", "s_cbranch_scc1 L_pcnt_ok", f"s_sleep {psleep}",
      f"s_add_u32 {s(sSPIN)}, {s(sSPIN)}, 1", f"s_cmp_lt_u32 {s(sSPIN)}, {SPINMAX}", "s_cbranch_scc1 L_pcnt", "L_pcnt_ok:")
    stamp(13)
    ML = 48
    CK = 128
    A(f"buffer_load_dwordx4 {v(ML,4)}, v16, {s(RWS,4)}, {s(sT2)} offen sc1", f"buffer_load_dwordx4 {v(ML+4,4)}, v16, {s(RWS,4)}, {s(sT2)} offen offset:16 sc1")
    for t in range(4):
        A(f"buffer_load_dwordx4 {v(CK+4*t,4)}, v15, {s(RWS,4)}, {s(sT1)} offen sc1", f"s_add_u32 {s(sT1)}, {s(sT1)}, 32768")
    A(f"v_add_u32 v17, {LCW}, v27", f"v_lshlrev_b32 v18, 5, v12", f"v_add_u32 v18, {LCW}, v18", "s_waitcnt vmcnt(4)")
    A(f"v_max3_f32 v20, {v(ML)}, {v(ML+2)}, {v(ML+4)}", f"v_max_f32 v20, v20, {v(ML+6)}",
      "v_max_f32_dpp v20, v20, v20 row_ror:8 row_mask:0xf bank_mask:0xf")
    xrow("v_max_f32", 20, 21)
    A(f"v_mul_f32 v20, {s(sC)}, v20")
    for t in range(4): A(f"v_fma_f32 {v(ML+2*t)}, {v(ML+2*t)}, {s(sC)}, -v20")
    for t in range(4): A(f"v_exp_f32 {v(ML+2*t)}, {v(ML+2*t)}")
    A(f"v_cvt_pk_bf16_f32 v22, {v(ML)}, {v(ML+2)}", f"v_cvt_pk_bf16_f32 v23, {v(ML+4)}, {v(ML+6)}",
      "v_lshlrev_b32 v30, 16, v22", "v_and_b32 v31, 0xffff0000, v22", "v_lshlrev_b32 v32, 16, v23", "v_and_b32 v33, 0xffff0000, v23",
      f"v_mul_f32 v20, v30, {v(ML+1)}", f"v_fmac_f32 v20, v31, {v(ML+3)}", f"v_fmac_f32 v20, v32, {v(ML+5)}", f"v_fmac_f32 v20, v33, {v(ML+7)}",
      "v_add_f32_dpp v20, v20, v20 row_ror:8 row_mask:0xf bank_mask:0xf")
    xrow("v_add_f32", 20, 21)
    A("v_rcp_f32 v20, v20")
    gemv(48, 22, CK, 4, 40, waits=lambda t: 3 - t)
    pair128(32, 48)
    A("v_mul_f32 v32, v32, v20", "v_mul_f32 v33, v33, v20", "v_cvt_pk_bf16_f32 v24, v32, v33",
      "s_mov_b32 exec_lo, 0x00ff00ff", "s_mov_b32 exec_hi, 0x00ff00ff", "ds_write_b32 v17, v24", "s_mov_b64 exec, -1",
      "ds_read_b128 v[32:35], v18", "ds_read_b128 v[36:39], v18 offset:16",
      f"s_lshl_b32 {s(sT0)}, {s(sH)}, 3", f"s_add_u32 {s(sT0)}, {s(sT0)}, {s(sJ)}", f"s_lshl_b32 {s(sT0)}, {s(sT0)}, 9", f"s_add_u32 {s(sT0)}, {s(sT0)}, {OMSG + 0x20000}",
      "s_waitcnt lgkmcnt(0)")
    gemv(48, 32, WU, 16, 40)
    A(f"v_mov_b32 v35, {s(sTAG)}")
    pack24(32, 48)
    msgstore()
    stamp(14)
    A("s_branch L_helper2")

    A("L_hb:")
    A("v_mov_b32 v28, 0", "v_mov_b32 v29, 0", "v_mov_b32 v30, 0", "v_mov_b32 v31, 0", f"ds_write_b128 {v(VFL)}, v[28:31]", "s_waitcnt lgkmcnt(0)")
    srd(R0, P_BWQ, 4 << 20); srd(R1, P_BX, 1024); srd(RWS, P_WS, WSSZ)
    A(f"s_load_dwordx2 {s(sTAG,2)}, {s(P_WS,2)}, {EPOCH}")
    A("s_barrier")
    A(f"s_cmp_eq_u32 {s(sJ)}, 0", "s_cbranch_scc0 L_noinit",
      f"s_lshl_b32 {s(sT0)}, {s(sH)}, 10", f"s_add_u32 {s(sT0)}, {s(sT0)}, {QCNT}", f"v_mov_b32 v29, {7*ND0}", "v_lshlrev_b32 v28, 8, v0", "s_mov_b64 exec, 15",
      f"buffer_store_dword v29, v28, {s(RWS,4)}, {s(sT0)} offen sc1", "s_mov_b64 exec, -1", "L_noinit:")
    x_loads(); slice_loads(WSL, R0, 13)
    q_partial(0, 0)
    A(f"s_cmp_eq_u32 {s(sJ)}, 7", "s_cbranch_scc1 L_acu_hb")
    if qsleep: A(f"s_sleep {qsleep}")
    A("L_hb2:")
    gather_q(LQB)
    flag_add(FQ, 24)
    stamp(2)
    A("s_branch L_helper2")

    A("L_nothelper:")
    A(f"s_cmp_lt_u32 {s(sW)}, 4", "s_cbranch_scc1 L_w03")
    A(f"s_cmp_eq_u32 {s(sW)}, {9 if nopf else 6}", "s_cbranch_scc0 L_nopf")
    A(f"s_getpc_b64 {s(sM0,2)}", "L_pc:", f"s_sub_u32 {s(sM0)}, {s(sM0)}, L_pc-{NAME}_kernel", f"s_subb_u32 {s(sM0+1)}, {s(sM0+1)}, 0")
    A(f"s_and_b32 {s(sT0)}, {s(sH)}, 3", f"s_lshl_b32 {s(sT0)}, {s(sT0)}, 13", f"v_lshlrev_b32 v13, 7, v0", f"v_add_u32 v13, {s(sT0)}, v13",
      f"v_min_u32 v13, L_codeend-{NAME}_kernel-4, v13", f"global_load_dword v31, v13, {s(sM0,2)}")
    A("L_nopf:")
    A(f"s_cmp_eq_u32 {s(sJ)}, 7", "s_cbranch_scc1 L_acu")
    A("s_barrier", "s_waitcnt lgkmcnt(0)")
    if diag == 5:
        A(f"s_cmp_eq_u32 {s(sW)}, 7", "s_cbranch_scc0 L_nosamp", f"s_cmp_eq_u32 {s(sJ)}, 0", "s_cbranch_scc0 L_nosamp",
          f"s_lshl_b32 {s(sT0)}, {s(sH)}, 10", f"s_add_u32 {s(sT0)}, {s(sT0)}, {QCNT}", f"s_add_u32 {s(sQP)}, {s(P_WS)}, {s(sT0)}", f"s_addc_u32 {s(sQP+1)}, {s(P_WS+1)}, 0")
        for k in range(1, 16):
            A(f"L_samp{k}:", "s_sleep 2", "s_memrealtime s[84:85]", "s_waitcnt lgkmcnt(0)", f"s_sub_u32 {s(sT1)}, s84, {s(sTS)}", f"s_cmp_lt_u32 {s(sT1)}, {100*(samp0+k)}", f"s_cbranch_scc1 L_samp{k}",
              f"s_mov_b32 {s(sNXT)}, 0", f"s_atomic_add {s(sNXT)}, {s(sQP,2)}, 0 glc", "s_waitcnt lgkmcnt(0)", "s_memrealtime s[84:85]", "s_waitcnt lgkmcnt(0)",
              f"s_sub_u32 {s(sT2)}, s84, {s(sTS)}", f"s_add_u32 {s(sT1)}, {s(sT1)}, {s(sT2)}", f"s_lshr_b32 {s(sT1)}, {s(sT1)}, 1",
              f"s_mul_i32 {s(sNXT)}, {s(sNXT)}, 40000", f"s_add_u32 {s(sNXT)}, {s(sNXT)}, {s(sT1)}", f"s_add_u32 {s(sTS+k)}, {s(sNXT)}, {s(sTS)}")
        A("s_branch L_fin", "L_nosamp:")
    if diag: A("s_sleep 127", "s_sleep 127", "s_sleep 127", "s_sleep 127")
    A("s_branch L_fin")
    A("L_w03:")
    A(f"s_cmp_eq_u32 {s(sJ)}, 7", "s_cbranch_scc1 L_acu")

    def item_addr():
        if PERM == 0: A(f"s_lshl_b32 {s(sOFF)}, {s(sCUR)}, 14")
        else: A(f"s_lshl_b32 {s(sOFF)}, {s(sCUR)}, 12")
        A(f"s_add_u32 {s(sOFF)}, {s(sOFF)}, {s(sHB)}")
    def head_base():
        A(f"s_lshl_b32 {s(sHB)}, {s(sH)}, 21", f"s_lshl_b32 {s(sT0)}, {s(sW)}, {12 if PERM == 0 else 19}", f"s_add_u32 {s(sHB)}, {s(sHB)}, {s(sT0)}")
    A(f"s_mov_b32 {s(sCUR)}, {s(sJ)}")
    head_base()
    item_addr()
    def stream_setup():
        A(f"v_lshl_add_u32 {v(VK)}, {v(VK)}, 8, {v(VD)}")
        srd(R0, P_K, 64 << 20); srd(R1, P_V, 64 << 20)
        A(f"s_lshl_b32 {s(sT0)}, {s(sH)}, 2", f"s_add_u32 {s(sT0)}, {s(sT0)}, {s(sW)}", f"s_lshl_b32 {s(sT0)}, {s(sT0)}, 8", f"s_add_u32 {s(sT0)}, {s(sT0)}, {QCNT}",
          f"s_add_u32 {s(sQP)}, {s(P_WS)}, {s(sT0)}", f"s_addc_u32 {s(sQP+1)}, {s(P_WS+1)}, 0")
    A("s_waitcnt lgkmcnt(0)")
    stream_setup()
    A("s_barrier")
    Q, ACC, S_, M_, L_ = 12, 28, 32, 36, 37
    TT, UU, AL, MC, PP, PK, MK = 38, 39, 40, 41, 42, 46, 48
    NL = 2 if T <= 8 else 3
    LOOP0 = ND0 - 1
    def slot(i):
        if i <= LOOP0: return i % 6
        return (LOOP0 + (i - LOOP0) % NL) % 6
    slotK = lambda i: 64 + 32*slot(i)
    slotV = lambda i: 64 + 32*slot(i) + 16
    st = dict(issued=0, landed=0)
    def grab():
        A(f"s_mov_b32 {s(sNXT)}, 1", f"s_atomic_add {s(sNXT)}, {s(sQP,2)}, 0 glc")
    def take():
        lab[0] += 1
        A("s_waitcnt lgkmcnt(0)", f"s_mov_b32 {s(sCUR)}, {s(sNXT)}")
        item_addr()
        A(f"s_cmp_lt_u32 {s(sCUR)}, 128", f"s_cbranch_scc1 L_take{lab[0]}", f"s_mov_b32 {s(sOFF)}, 0",
          f"s_mov_b32 {s(R0+2)}, 0", f"s_mov_b32 {s(R1+2)}, 0")
        flag_add(FX, UU)
        A(f"L_take{lab[0]}:")
    def issue(TH):
        idx = st['issued']; it, k = divmod(idx, 8)
        if k == 0 and it > 0:
            if it < ND0:
                A(f"s_add_u32 {s(sCUR)}, {s(sCUR)}, 7"); item_addr()
            else: take()
        if k == KA and it >= ND0 - 1: grab()
        if TH and idx - st['landed'] >= TH:
            A(f"s_waitcnt vmcnt({TH-1})"); st['landed'] = idx - (TH-1)
        if k < 4: A(f"buffer_load_dwordx4 {v(slotK(it)+4*k,4)}, {v(VK)}, {s(R0,4)}, {s(sOFF)} offen offset:{1024*k} {nt}")
        else:     A(f"buffer_load_dwordx4 {v(slotV(it)+4*(k-4),4)}, {v(V16)}, {s(R1,4)}, {s(sOFF)} offen offset:{1024*(k-4)} {nt}")
        st['issued'] += 1
    def needs(x):
        if st['landed'] < x:
            A(f"s_waitcnt vmcnt({st['issued']-x})"); st['landed'] = x
    def stream_init():
        selectors(13, 14)
        for r in range(4): A(f"v_mov_b32 {v(ACC+r)}, 0")
        A(f"v_mov_b32 {v(M_)}, {hex(NEGBIG)}", f"v_mov_b32 {v(L_)}, 0", f"v_add_u32 v11, {LQB}, {v(VD)}",
          f"s_lshl_b32 {s(sT0)}, {s(sW)}, 9", f"s_add_u32 {s(sT0)}, {s(sT0)}, {LOB}", f"v_add_u32 v16, {s(sT0)}, {v(V16)}",
          f"s_lshl_b32 {s(sT0)}, {s(sW)}, 3", f"s_add_u32 {s(sT0)}, {s(sT0)}, {LOM}", f"v_mov_b32 v17, {s(sT0)}")
    def read_q():
        flag_wait(FQ, 1, UU, sleep=1)
        A(f"ds_read_b128 {v(Q,4)}, v11", "s_waitcnt lgkmcnt(0)")
    assert ND0 - 1 > NPRE or (ND0 - 1 == NPRE)
    stamp(5, 4)
    for i in range(T0): issue(T0)
    stream_init()
    while st['issued'] < 8*NPRE:
        issue(T0)
        if st['issued'] == T0 + 1: stamp(6, 4)
        if st['issued'] in (12, 18, 24, 30): stamp(7 + (st['issued'] - 12)//6, 4)
    stamp(1)
    read_q()
    stamp(2)
    done_qk = [-1]; done_pv = [-1]
    def can_issue():
        it, k = divmod(st['issued'], 8)
        prev = max([x for x in range(it) if slot(x) == slot(it)], default=-1)
        return (done_qk[0] if k < 4 else done_pv[0]) >= prev
    def advance(x):
        n = 0
        while st['issued'] < x + T:
            assert can_issue(); issue(T); n += 1
        if n == 0:
            for _ in range(CU):
                if can_issue(): issue(T)
    def softmax_part(i):
        for r in range(4): mfma(MK+4*r, slotK(i)+4*r, Q, "0")
        rowdot(S_, MK, 4)
        A(f"v_max3_f32 {v(TT)}, {v(S_)}, {v(S_+1)}, {v(S_+2)}", f"v_max3_f32 {v(TT)}, {v(TT)}, {v(S_+3)}, {v(M_)}")
        xrow("v_max_f32", TT, UU)
        A(f"v_sub_f32 {v(AL)}, {v(M_)}, {v(TT)}", f"v_mul_f32 {v(MC)}, {s(sC)}, {v(TT)}", f"v_mul_f32 {v(AL)}, {s(sC)}, {v(AL)}",
          f"v_mov_b32 {v(M_)}, {v(TT)}", f"v_exp_f32 {v(AL)}, {v(AL)}")
        for r in range(4): A(f"v_fma_f32 {v(PP+r)}, {v(S_+r)}, {s(sC)}, -{v(MC)}")
        for r in range(4): A(f"v_exp_f32 {v(PP+r)}, {v(PP+r)}")
        for r in range(4): A(f"v_mul_f32 {v(ACC+r)}, {v(AL)}, {v(ACC+r)}")
        A(f"v_cvt_pk_bf16_f32 {v(PK)}, {v(PP)}, {v(PP+1)}", f"v_cvt_pk_bf16_f32 {v(PK+1)}, {v(PP+2)}, {v(PP+3)}")
        A(f"v_fma_f32 {v(L_)}, {v(L_)}, {v(AL)}, {v(PP)}", f"v_add_f32 {v(PP+1)}, {v(PP+1)}, {v(PP+2)}",
          f"v_add_f32 {v(L_)}, {v(L_)}, {v(PP+3)}", f"v_add_f32 {v(L_)}, {v(L_)}, {v(PP+1)}")
        for r in range(4): masked(MK+4*r, PK + (r >> 1), r & 1)
    def consume(i):
        advance(8*i + 4)
        needs(8*i + 4)
        done_qk[0] = i
        softmax_part(i)
        for r in range(4):
            if r == 0 or st['issued'] < 8*i+5+r+T: advance(8*i + 5 + r)
            needs(8*i + 5 + r)
            mfma(ACC, MK+4*r, slotV(i)+4*r, ACC)
        done_pv[0] = i
    def rawload(it, k):
        if k < 4: A(f"buffer_load_dwordx4 {v(slotK(it)+4*k,4)}, {v(VK)}, {s(R0,4)}, {s(sOFF)} offen offset:{1024*k} {nt}")
        else:     A(f"buffer_load_dwordx4 {v(slotV(it)+4*(k-4),4)}, {v(V16)}, {s(R1,4)}, {s(sOFF)} offen offset:{1024*(k-4)} {nt}")
    assert T <= 8, "loop exit test assumes one item of lookahead"
    assert KF <= 128 and NL == 2
    for i in range(LOOP0):
        consume(i)
        if i in (6, 8, 10, 12): stamp(5 + (i-6)//2, 3)
    assert st['issued'] == 8*LOOP0 + T, (st, LOOP0)
    st['landed'] = 8*LOOP0
    A("L_loop:")
    for i in range(LOOP0, LOOP0 + NL):
        consume(i)
        A(f"s_cmp_lt_u32 {s(sCUR)}, {KF}", f"s_cbranch_scc0 L_leave1" if i == LOOP0 else "s_cbranch_scc1 L_loop")
    if KF < 128:
        for p in (0, 1):
            A(f"L_leave{p}:", f"s_cmp_lt_u32 {s(sCUR)}, 128", "s_cbranch_scc0 L_sdone")
            if KA >= T: grab()
            for k in range(T, 8): rawload(LOOP0 + p, k)
            if p == 0: A("s_branch L_fast0")
        for p in (1, 0):
            A(f"L_fast{p}:")
            take()
            if KAF == 0: grab()
            for k in range(8): rawload(LOOP0 + p + 1, k)
            A("s_waitcnt vmcnt(12)")
            if KAF == 1: grab()
            softmax_part(LOOP0 + p)
            for r in range(4):
                A(f"s_waitcnt vmcnt({11-r})")
                mfma(ACC, MK+4*r, slotV(LOOP0 + p)+4*r, ACC)
            A(f"s_cmp_lt_u32 {s(sCUR)}, 128", "s_cbranch_scc0 L_sdone" if p == 1 else "s_cbranch_scc1 L_fast1")
    else:
        A("L_leave1:")
    A("L_sdone:")
    xrow("v_add_f32", L_, UU)
    A("ds_write_b64 v17, v[36:37]", "s_mov_b32 exec_hi, 0", "s_nop 0", f"ds_write_b128 v16, {v(ACC,4)}")
    flag_add(FP, UU)
    stamp(4)
    A("s_branch L_fin")

    A("L_helper2:")
    def wo_loads():
        for t in range(16):
            if t % 4 == 0: A(f"s_mov_b32 {s(sT0)}, {1024*t}")
            A(f"buffer_load_dwordx4 {v(WSL+4*t,4)}, v13, {s(R4,4)}, {s(sT0)} offen offset:{1024*(t&3)} {nt}")
    A(f"v_lshrrev_b32 v14, 3, v0", f"v_lshlrev_b32 v13, 14, v14", f"v_and_b32 v15, 7, v0", f"v_lshl_add_u32 v13, v15, 4, v13",
      f"s_lshl_b32 {s(sT0)}, {s(sH)}, 17", f"s_lshl_b32 {s(sT2)}, {s(sJ)}, 7", f"s_add_u32 {s(sT0)}, {s(sT0)}, {s(sT2)}", f"v_add_u32 v13, {s(sT0)}, v13")
    A(f"s_lshl_b32 {s(sT0)}, {s(sAB)}, 8", f"s_add_u32 {s(sT0)}, {s(sT0)}, {LOTB}", f"v_lshl_add_u32 v14, v14, 5, {s(sT0)}", f"v_add_u32 v15, {s(sT0)}, v27")
    srd(R3, P_OUT, 2048)
    A(f"s_cmp_eq_u32 {s(sAB)}, 1")
    srd_sel(R4, P_AWO, P_BWO, 4 << 20)
    A(f"s_lshl_b32 {s(sT1)}, {s(sAB)}, 5", f"s_add_u32 {s(sT1)}, {s(sT1)}, {s(sH)}", f"s_lshl_b32 {s(sT1)}, {s(sT1)}, 12", f"s_add_u32 {s(sT1)}, {s(sT1)}, {OMSG}")
    sY0, sY1, sYO = sOFF, sSTR, sT3
    A(f"s_lshl_b32 {s(sY1)}, {s(sAB)}, 3", f"s_add_u32 {s(sY1)}, {s(sY1)}, {s(sJ)}", f"s_lshl_b32 {s(sY1)}, {s(sY1)}, 13", f"s_add_u32 {s(sY1)}, {s(sY1)}, {YMSG}",
      f"s_lshl_b32 {s(sY0)}, {s(sH)}, 8", f"s_add_u32 {s(sY0)}, {s(sY0)}, {s(sY1)}", f"s_lshl_b32 {s(sT2)}, {s(sH)}, 5", f"s_add_u32 {s(sY1)}, {s(sY1)}, {s(sT2)}",
      f"v_lshlrev_b32 v37, 5, v11", f"v_lshl_add_u32 v37, v12, 4, v37",
      f"v_lshrrev_b32 v36, 1, v0", f"v_lshlrev_b32 v36, 8, v36", f"v_and_b32 v38, 1, v0", f"v_lshl_add_u32 v36, v38, 4, v36", f"v_lshlrev_b32 v38, 3, v38")
    A(f"s_xor_b32 {s(sYO)}, {s(sAB)}, 1", f"s_lshl_b32 {s(sYO)}, {s(sYO)}, 10", f"s_lshl_b32 {s(sT2)}, {s(sJ)}, 7", f"s_add_u32 {s(sYO)}, {s(sYO)}, {s(sT2)}",
      f"s_lshl_b32 {s(sT2)}, {s(sH)}, 4", f"s_add_u32 {s(sYO)}, {s(sYO)}, {s(sT2)}", f"v_mov_b32 v35, {s(sTAG)}", "v_mov_b32 v39, 1.0")
    if late_wo:
        fw = lambda n: flag_wait(FX if n <= 4 else FP, n if n <= 4 else n - 4, 24, sleep=xsleep if n < 8 else 0)
        if NXA == NX: fw(NX)
        else:
            A(f"s_cmp_eq_u32 {s(sAB)}, 1", "s_cbranch_scc1 L_xa")
            if NX: fw(NX)
            A("s_branch L_xb", "L_xa:")
            if NXA: fw(NXA)
            A("L_xb:")
    stamp(3, 1)
    wo_loads()
    A(f"s_cmp_eq_u32 {s(sAB)}, 1", "s_cbranch_scc1 L_ha_tail")
    SB = 60
    A(f"v_and_b32 v30, 31, v0", f"v_lshlrev_b32 v30, 4, v30", f"v_lshrrev_b32 v24, 5, v0", f"v_lshl_add_u32 v30, v24, 10, v30", f"v_add_u32 v30, {LOB}, v30",
      f"v_lshlrev_b32 v31, 4, v24", f"v_add_u32 v31, {LOM}, v31",
      f"v_and_b32 v24, 16, v0", f"v_cmp_ne_u32 vcc, 0, v24", f"s_lshl_b32 {s(sT0)}, {s(sJ)}, 9", f"s_add_u32 {s(sT0)}, {s(sT0)}, {s(sT1)}")
    for x in range(4): A(f"v_cndmask_b32 {v(SB+x)}, {v(SEL+x)}, {v(SEL+4+x)}, vcc")
    flag_wait(FP, 4, 24, sleep=0 if late_wo else 1)
    A(f"ds_read_b128 v[48:51], v31", f"ds_read_b128 v[40:43], v30", f"ds_read_b128 v[44:47], v30 offset:512")
    stamp(4)
    A("s_waitcnt lgkmcnt(2)", "v_max_f32 v28, v48, v50")
    xrow("v_max_f32", 28, 29, rows=(32,))
    A("v_sub_f32 v48, v48, v28", "v_sub_f32 v50, v50, v28", f"v_mul_f32 v48, {s(sC)}, v48", f"v_mul_f32 v50, {s(sC)}, v50",
      "v_exp_f32 v48, v48", "v_exp_f32 v50, v50", "s_waitcnt lgkmcnt(0)",
      "v_mul_f32 v29, v48, v49", "v_fmac_f32 v29, v50, v51")
    for r in range(4): A(f"v_mul_f32 {v(40+r)}, v48, {v(40+r)}")
    A("v_mov_b32 v24, v29")
    for r in range(4): A(f"v_fmac_f32 {v(40+r)}, v50, {v(44+r)}")
    A("v_permlane32_swap_b32 v29, v24")
    for r in range(4): A(f"v_mov_b32 {v(44+r)}, {v(40+r)}")
    A("v_add_f32 v29, v29, v24", "v_max_f32 v24, 0x00800000, v29", "v_rcp_f32 v24, v24", "v_log_f32 v29, v29")
    for r in range(4): A(f"v_permlane32_swap_b32 {v(40+r)}, {v(44+r)}")
    for r in range(4): A(f"v_add_f32 {v(40+r)}, {v(40+r)}, {v(44+r)}")
    A(f"v_fma_f32 v34, v28, {s(sC)}, v29")
    for r in range(4): A(f"v_mul_f32 {v(40+r)}, v24, {v(40+r)}")
    A("v_cvt_pk_bf16_f32 v32, v40, v41", "v_cvt_pk_bf16_f32 v33, v42, v43")
    msgstore()
    stamp(5, 1)
    FB = 64
    ppoll(msgload, 4, MSG, FB, DB)
    stamp(6, 1)
    ls = lambda u: v(FB+4*u+2)
    A(f"v_max3_f32 v28, {ls(0)}, {ls(1)}, {ls(2)}", f"v_max_f32 v28, v28, {ls(3)}")
    xrow("v_max_f32", 28, 29, rows=(32,))
    for u in range(4): A(f"v_sub_f32 {ls(u)}, {ls(u)}, v28")
    for u in range(4): A(f"v_exp_f32 {ls(u)}, {ls(u)}")
    A(f"v_cvt_pk_bf16_f32 v22, {ls(0)}, {ls(1)}", f"v_cvt_pk_bf16_f32 v23, {ls(2)}, {ls(3)}")
    for u in range(4):
        for x in range(2): A(f"v_perm_b32 {v(40+2*u+x)}, {v(22+(u>>1))}, {v(22+(u>>1))}, {v(SB+2*x+(u&1))}")
    for u in range(4): A(f"v_mfma_f32_16x16x16_bf16 v[28:31], {v(40+2*u,2)}, {v(FB+4*u,2)}, {'0' if u == 0 else 'v[28:31]'}")
    A("v_lshlrev_b32 v48, 16, v22", "v_and_b32 v49, 0xffff0000, v22", "v_lshlrev_b32 v50, 16, v23", "v_and_b32 v51, 0xffff0000, v23",
      "v_add_f32 v48, v48, v49", "v_add_f32 v50, v50, v51", "v_add_f32 v39, v48, v50")
    pair256(32, 28)
    A(f"v_cvt_pk_bf16_f32 v24, v32, v33", f"ds_write_b32 v15, v24", f"ds_read_b128 {v(XR,4)}, v14", f"ds_read_b128 {v(XR+4,4)}, v14 offset:16")
    xrow("v_add_f32", 39, 48, rows=(32,))
    A("v_rcp_f32 v39, v39", "s_branch L_tail_common")
    A("L_ha_tail:")
    gather8(32)
    stamp(6, 1)
    A(f"v_cvt_pk_bf16_f32 v24, v32, v33", f"ds_write_b32 v15, v24", f"ds_read_b128 {v(XR,4)}, v14", f"ds_read_b128 {v(XR+4,4)}, v14 offset:16")
    A("L_tail_common:")
    A("s_waitcnt lgkmcnt(0)")
    gemv(28, XR, WSL, 16, 40)
    for r in range(4): A(f"v_mov_b32 {v(40+r)}, {v(28+r)}")
    for r in range(4): A(f"v_permlane32_swap_b32 {v(28+r)}, {v(40+r)}")
    for r in range(4): A(f"v_add_f32_dpp {v(28+r)}, {v(40+r)}, {v(28+r)} row_ror:8 row_mask:0xf bank_mask:0xf")
    for r in range(4): A(f"v_mul_f32 {v(28+r)}, v39, {v(28+r)}")
    pack24(32, 28)
    A(f"s_mov_b32 exec_lo, 0x00ff00ff", f"s_mov_b32 exec_hi, 0",
      f"buffer_store_dwordx4 v[32:35], v37, {s(RWS,4)}, {s(sY0)} offen sc1", "s_mov_b64 exec, -1")
    stamp(7, 1)
    A(f"s_cmp_lt_u32 {s(sH)}, 8", "s_cbranch_scc0 L_fin")
    ppoll(lambda u, r: f"buffer_load_dwordx4 {v(r,4)}, v36, {s(RWS,4)}, {s(sY1)} offen sc1", 1, 96, 40, DF)
    stamp(8, 1)
    unpack24([40])
    for k in (8, 4, 2):
        for e in range(4): A(f"v_add_f32_dpp {v(40+e)}, {v(40+e)}, {v(40+e)} row_ror:{k} row_mask:0xf bank_mask:0xf")
    A("v_permlane32_swap_b32 v40, v42", "v_permlane32_swap_b32 v41, v43", "v_add_f32 v40, v40, v42", "v_add_f32 v41, v41, v43",
      "v_mov_b32 v42, v40", "v_mov_b32 v43, v41", "v_permlane16_swap_b32 v40, v42", "v_permlane16_swap_b32 v41, v43",
      "v_add_f32 v40, v40, v42", "v_add_f32 v41, v41, v43", "v_cvt_pk_bf16_f32 v24, v40, v41",
      "v_lshrrev_b32 v28, 5, v0", "v_lshl_add_u32 v38, v28, 2, v38", "s_mov_b32 exec_lo, 3", "s_mov_b32 exec_hi, 3",
      f"buffer_store_dword v24, v38, {s(R3,4)}, {s(sYO)} offen {outf}")
    A(f"s_cmp_lg_u32 s2, 0", "s_cbranch_scc1 L_noepoch", f"s_lshl_b32 {s(sT0)}, {s(sAB)}, 2", "s_mov_b64 exec, 1",
      f"buffer_store_dword v35, v38, {s(RWS,4)}, {s(sT0)} offen offset:{EPOCH}", "L_noepoch:", "s_mov_b64 exec, -1")
    stamp(15)
    A("s_branch L_fin")

    ckr = {1: 64, 2: 96, 3: 32}
    def ckv_half(rho, hf, TH=0):
        A(f"s_add_u32 {s(sT0)}, {s(sOFF)}, {65536*rho + 4096*hf}")
        for x in range(4):
            if TH: A(f"s_waitcnt vmcnt({TH-1})")
            A(f"buffer_load_dwordx4 {v(ckr[rho]+16*hf+4*x,4)}, {v(V16)}, {s(R0,4)}, {s(sT0)} offen offset:{1024*x} {nt}")
    def ckv_loads(TA):
        srd(R0, P_CKV, 8 << 20)
        A(f"s_lshl_b32 {s(sOFF)}, {s(sH)}, 18", f"s_lshl_b32 {s(sT0)}, {s(sW)}, 13", f"s_add_u32 {s(sOFF)}, {s(sOFF)}, {s(sT0)}",
          f"s_mul_i32 {s(sSTR)}, {s(sW)}, {8*RS}", f"s_mov_b32 m0, {s(sSTR)}", f"s_mov_b32 {s(sT0)}, {s(sOFF)}")
        for x in range(8):
            if TA and x >= TA: A(f"s_waitcnt vmcnt({TA-1})")
            A(f"buffer_load_dwordx4 {v(V16)}, {s(R0,4)}, {s(sT0)} offen {nt} lds")
            if x < 7: A(f"s_add_u32 m0, m0, {RS}", f"s_addk_i32 {s(sT0)}, 1024")
        for rho in (1, 2):
            for hf in range(2): ckv_half(rho, hf, TA)
    A("L_acu_hb:")
    A("s_nop 1")
    ckv_loads(TAH)
    A(f"s_movk_i32 {s(sT0)}, {FLG1}", f"s_add_u32 {s(sTAG2)}, {s(sTAG2)}, 0x9e3779b9")
    poll([f"buffer_load_dwordx4 v[16:19], {v(V16)}, {s(RWS,4)}, {s(sT0)} offen sc1"], [[16, 17, 18, 19]], tag=sTAG2)
    stamp(5, 2)
    for x in range(32):
        if x % 4 == 0: A(f"s_mov_b32 {s(sT0)}, {QABS + 1024*x}")
        A(f"buffer_load_dwordx4 {v(128+4*x,4)}, {v(V16)}, {s(RWS,4)}, {s(sT0)} offen offset:{1024*(x&3)} sc1")
    A(f"v_add_u32 v13, {LB1}, {v(V16)}")
    for x in range(32):
        A(f"s_waitcnt vmcnt({31-x})", f"ds_write_b128 v13, {v(128+4*x,4)} offset:{RS*x}")
    A("s_branch L_acu_rest")
    A("L_acu_ha:")
    ckv_loads(TAH)
    A("s_branch L_acu_rest")
    A("L_acu:")
    A("s_waitcnt lgkmcnt(0)", "s_barrier")
    srd(RWS, P_WS, WSSZ)
    ckv_loads(TA)
    A("L_acu_rest:")
    A("s_setprio 0")
    aQK, aTR, aMXw, aMX0, aMX1, aPw, aP0, aP1, aCW = 14, 16, 18, 19, 20, 21, 22, 23, 28
    sKT, sHT = sT1, sT2
    A(f"s_and_b32 {s(sKT)}, {s(sW)}, 3", f"s_lshr_b32 {s(sHT)}, {s(sW)}, 2", f"s_movk_i32 {s(sT3)}, {RS}",
      f"v_mul_lo_u32 v24, v11, {s(sT3)}", f"v_lshl_add_u32 v24, v12, 4, v24",
      f"s_mul_i32 {s(sT0)}, {s(sKT)}, {16*RS}", f"v_add_u32 {v(aQK)}, {s(sT0)}, v24", f"v_add_u32 {v(aQK+1)}, {LB1}, {v(aQK)}",
      f"s_mul_i32 {s(sT0)}, {s(sHT)}, {16*RS}", f"s_add_u32 {s(sT0)}, {s(sT0)}, {LB1}", f"v_add_u32 v13, {s(sT0)}, v24",
      f"v_lshrrev_b32 v24, 2, v0", f"v_mul_lo_u32 v24, v24, {s(sT3)}", f"v_and_b32 v30, 3, v0", f"v_lshl_add_u32 v24, v30, 3, v24",
      f"s_lshl_b32 {s(sT0)}, {s(sW)}, 7", f"v_add_u32 {v(aTR)}, {s(sT0)}, v24", f"v_add_u32 {v(aTR+1)}, {LB1}, {v(aTR)}",
      f"s_lshl_b32 {s(sT0)}, {s(sHT)}, 8", f"v_lshl_add_u32 v24, v11, 4, {s(sT0)}", f"v_add_u32 {v(aMX0)}, {LMX}, v24",
      f"v_xor_b32 v24, 256, v24", f"v_add_u32 {v(aMX1)}, {LMX}, v24",
      f"s_lshl_b32 {s(sT0)}, {s(sKT)}, 2", f"v_add_u32 {v(aMXw)}, {s(sT0)}, {v(aMX0)}",
      f"s_lshl_b32 {s(sT0)}, {s(sHT)}, 10", f"v_add_u32 v24, {s(sT0)}, {v(V16)}", f"v_add_u32 {v(aP0)}, {LP}, v24",
      f"v_xor_b32 v24, 1024, v24", f"v_add_u32 {v(aP1)}, {LP}, v24",
      f"s_lshr_b32 {s(sT0)}, {s(sKT)}, 1", f"s_lshl_b32 {s(sT0)}, {s(sT0)}, 11", f"s_and_b32 {s(sT3)}, {s(sKT)}, 1", f"s_lshl_b32 {s(sT3)}, {s(sT3)}, 3",
      f"s_add_u32 {s(sT0)}, {s(sT0)}, {s(sT3)}", f"v_add_u32 {v(aPw)}, {s(sT0)}, {v(aP0)}",
      f"v_add_u32 {v(aCW)}, {s(sSTR)}, {v(V16)}", f"v_add_u32 {v(aCW+1)}, {LB1}, {v(aCW)}")
    A("s_waitcnt lgkmcnt(0)", "s_barrier")
    stamp(6, 2)
    QA, AC, ST = 128, 192, 224
    for ks in range(16): A(f"ds_read_b128 {v(QA+4*ks,4)}, v13 offset:{64*ks}")
    ckv_half(3, 0)
    def ck_write(rho):
        for x in range(8): A(f"ds_write_b128 {v(aCW+(rho&1))}, {v(ckr[rho]+4*x,4)} offset:{RS*x}")
    A(f"s_waitcnt vmcnt(12) lgkmcnt(0)", "s_barrier")
    ck_write(1)
    SS, MM, ALP, PO, MXR = 64, 68, 70, 72, 72
    ALP = 88; LL = 92; PT = 30
    for rho in range(4):
        bq = rho & 1
        stamp(7 + rho, 2)
        for ks in range(7): A(f"ds_read_b128 {v(ST+4*ks,4)}, {v(aQK+bq)} offset:{64*ks}")
        for ks in range(16):
            if ks + 7 < 16: A(f"ds_read_b128 {v(ST+4*((ks+7)&7),4)}, {v(aQK+bq)} offset:{64*(ks+7)}")
            A(f"s_waitcnt lgkmcnt({min(7, 15-ks)})")
            mfma(SS, ST+4*(ks & 7), QA+4*ks, "0" if ks == 0 else SS)
        if rho == 2:
            A("s_waitcnt vmcnt(0)"); ck_write(3)
        A(f"v_max3_f32 v24, {v(SS)}, {v(SS+1)}, {v(SS+2)}", f"v_max_f32 v24, v24, {v(SS+3)}")
        xrow("v_max_f32", 24, PT)
        A("s_mov_b64 exec, 0xffff", f"ds_write_b32 {v(aMXw)}, v24", "s_mov_b64 exec, -1", "s_waitcnt lgkmcnt(0)", "s_barrier")
        A(f"ds_read_b128 {v(MXR,4)}, {v(aMX0)}", f"ds_read_b128 {v(MXR+4,4)}, {v(aMX1)}")
        def tr_read(x):
            Tt, kap = x >> 1, x & 1
            b = ST + 4*x
            A(f"ds_read_b64_tr_b16 {v(b,2)}, {v(aTR+bq)} offset:{32*kap*RS + 32*Tt}", f"ds_read_b64_tr_b16 {v(b+2,2)}, {v(aTR+bq)} offset:{(32*kap+16)*RS + 32*Tt}")
        for x in range(4): tr_read(x)
        A("s_waitcnt lgkmcnt(8)")
        for u in range(2):
            b = MXR + 4*u
            A(f"v_max3_f32 {v(b)}, {v(b)}, {v(b+1)}, {v(b+2)}")
            if rho == 0: A(f"v_max_f32 {v(MM+u)}, {v(b)}, {v(b+3)}")
            else:
                A(f"v_max3_f32 {v(b)}, {v(b)}, {v(b+3)}, {v(MM+u)}", f"v_sub_f32 {v(ALP+2*u)}, {v(MM+u)}, {v(b)}", f"v_mov_b32 {v(MM+u)}, {v(b)}",
                  f"v_mul_f32 {v(ALP+2*u)}, {s(sC)}, {v(ALP+2*u)}", f"v_exp_f32 {v(ALP+2*u)}, {v(ALP+2*u)}")
        A(f"v_mul_f32 v24, {s(sC)}, {v(MM)}")
        for r in range(4): A(f"v_fma_f32 {v(SS+r)}, {v(SS+r)}, {s(sC)}, -v24")
        for r in range(4): A(f"v_exp_f32 {v(SS+r)}, {v(SS+r)}")
        A(f"v_cvt_pk_bf16_f32 {v(PT)}, {v(SS)}, {v(SS+1)}", f"v_cvt_pk_bf16_f32 {v(PT+1)}, {v(SS+2)}, {v(SS+3)}", f"ds_write_b64 {v(aPw)}, {v(PT,2)}")
        for x in range(4, 8): tr_read(x)
        A(f"v_add_f32 {v(SS)}, {v(SS)}, {v(SS+1)}", f"v_add_f32 {v(SS+2)}, {v(SS+2)}, {v(SS+3)}")
        if rho == 0: A(f"v_add_f32 {v(LL)}, {v(SS)}, {v(SS+2)}")
        else:
            A(f"v_fma_f32 {v(LL)}, {v(LL)}, {v(ALP)}, {v(SS)}", f"v_add_f32 {v(LL)}, {v(LL)}, {v(SS+2)}")
            for Tt in range(4):
                for u in range(2):
                    for r in (0, 2):
                        d = v(AC+8*Tt+4*u+r, 2)
                        A(f"v_pk_mul_f32 {d}, {d}, {v(ALP+2*u,2)} op_sel_hi:[1,0]")
        A("s_waitcnt lgkmcnt(0)", "s_barrier")
        for kap in range(2):
            for u in range(2): A(f"ds_read_b128 {v(PO+8*kap+4*u,4)}, {v(aP0+u)} offset:{2048*kap}")
        nw = 0
        if rho == 0:
            A(f"s_waitcnt vmcnt(4)"); ck_write(2); nw = 8
            ckv_half(3, 1)
        for kap in range(2):
            A(f"s_waitcnt lgkmcnt({nw + (2 if kap == 0 else 0)})")
            for Tt in range(4):
                for u in range(2):
                    d = AC+8*Tt+4*u
                    mfma(d, ST+4*(2*Tt+kap), PO+8*kap+4*u, "0" if (rho == 0 and kap == 0) else d)
    stamp(11)
    xrow("v_add_f32", LL, 24)
    A(f"s_movk_i32 {s(sT3)}, {RS}", f"v_mul_lo_u32 v24, v11, {s(sT3)}", f"v_lshl_add_u32 v24, v12, 3, v24", f"s_lshl_b32 {s(sT0)}, {s(sW)}, 7", f"v_add_u32 v24, {s(sT0)}, v24",
      f"s_mul_i32 {s(sT0)}, {s(sHT)}, {16*RS}", f"v_add_u32 v14, {s(sT0)}, v24", f"s_sub_u32 {s(sT0)}, {16*RS}, {s(sT0)}", f"v_add_u32 v15, {s(sT0)}, v24")
    A("s_mov_b64 exec, 0xffff", f"ds_write_b32 {v(aMXw)}, {v(LL)} offset:1024", "s_mov_b64 exec, -1")
    for Tt in range(4):
        for u in range(2):
            d = AC+8*Tt+4*u; o = 40 + 4*Tt + 2*u
            A(f"v_cvt_pk_bf16_f32 {v(o)}, {v(d)}, {v(d+1)}", f"v_cvt_pk_bf16_f32 {v(o+1)}, {v(d+2)}, {v(d+3)}", f"ds_write_b64 {v(14+u)}, {v(o,2)} offset:{32*Tt}")
    A(f"s_mul_i32 {s(sT0)}, {s(sW)}, {4*RS}", f"v_add_u32 v13, {s(sT0)}, {v(V16)}",
      f"s_lshl_b32 {s(sT1)}, {s(sH)}, 15", f"s_lshl_b32 {s(sT0)}, {s(sW)}, 12", f"s_add_u32 {s(sT1)}, {s(sT1)}, {s(sT0)}", f"s_add_u32 {s(sT1)}, {s(sT1)}, {PART}")
    A("s_waitcnt lgkmcnt(0)", "s_barrier")
    for x in range(4): A(f"ds_read_b128 {v(40+4*x,4)}, v13 offset:{RS*x}")
    for x in range(4): A(f"s_waitcnt lgkmcnt({3-x})", f"buffer_store_dwordx4 {v(40+4*x,4)}, {v(V16)}, {s(RWS,4)}, {s(sT1)} offen offset:{1024*x} sc1")
    A(f"v_and_b32 v24, 31, v0", f"v_lshlrev_b32 v24, 8, v24", f"s_cmp_eq_u32 {s(sW)}, 5", "s_cbranch_scc0 L_acu_noml")
    A(f"v_lshrrev_b32 v30, 4, v24", f"v_add_u32 v30, {LLS}, v30", f"ds_read_b128 v[56:59], v30",
      f"v_and_b32 v20, 16, v0", f"v_cmp_eq_u32 vcc, 0, v20", f"v_cndmask_b32 v20, {v(MM)}, {v(MM+1)}, vcc",
      f"s_lshl_b32 {s(sT0)}, {s(sH)}, 3", f"s_add_u32 {s(sT0)}, {s(sT0)}, {MLB}", "s_waitcnt lgkmcnt(0)",
      "v_add_f32 v56, v56, v57", "v_add_f32 v58, v58, v59", "v_add_f32 v21, v56, v58",
      "s_mov_b32 exec_hi, 0", f"buffer_store_dwordx2 v[20:21], v24, {s(RWS,4)}, {s(sT0)} offen sc1", "s_mov_b64 exec, -1", "L_acu_noml:")
    A("s_waitcnt vmcnt(0)", "s_barrier")
    stamp(12)
    A(f"s_cmp_ge_u32 {s(sW)}, 6", "s_cbranch_scc1 L_fin")
    A(f"s_cmp_lt_u32 {s(sW)}, 4", "s_cbranch_scc1 L_acu_stream")
    A("s_setprio 3")
    A(f"s_lshl_b32 {s(sT1)}, {s(sH)}, 12", f"s_add_u32 {s(sT1)}, {s(sT1)}, {QMSG}")
    A(f"s_cmp_eq_u32 {s(sW)}, 5", "s_cbranch_scc0 L_hb2")
    A(f"v_mov_b32 v22, 1", f"s_movk_i32 {s(sT0)}, {PCNT}", "s_mov_b32 exec_hi, 0", f"buffer_atomic_add v22, v24, {s(RWS,4)}, {s(sT0)} offen sc1",
      "s_mov_b64 exec, -1", "s_branch L_ha2")
    A("L_acu_stream:")
    head_base()
    stream_setup()
    stream_init()
    read_q()
    grab()
    take()
    A(f"s_cmp_lt_u32 {s(sCUR)}, 128", "s_cbranch_scc0 L_sdone")
    st['issued'] = 8*LOOP0; st['landed'] = 8*LOOP0
    for n in range(T):
        idx = st['issued']; it, k = divmod(idx, 8)
        if k == KA: grab()
        if k < 4: A(f"buffer_load_dwordx4 {v(slotK(it)+4*k,4)}, {v(VK)}, {s(R0,4)}, {s(sOFF)} offen offset:{1024*k} {nt}")
        else:     A(f"buffer_load_dwordx4 {v(slotV(it)+4*(k-4),4)}, {v(V16)}, {s(R1,4)}, {s(sOFF)} offen offset:{1024*(k-4)} {nt}")
        st['issued'] += 1
    A("s_branch L_loop")

    A("L_fin:")
    if amp:
        wg, wv, k1, k2, md = amp
        A(f"s_cmp_eq_u32 s2, {wg}", "s_cbranch_scc0 L_end", f"s_cmp_eq_u32 {s(sW)}, {wv}", "s_cbranch_scc0 L_end",
          f"s_sub_u32 {s(sT0)}, {s(sTS+k2)}, {s(sTS+k1)}", f"s_min_u32 {s(sT0)}, {s(sT0)}, 10000", f"s_lshl_b32 {s(sT0)}, {s(sT0)}, 2", f"s_add_u32 {s(sT0)}, {s(sT0)}, 6000",
          "L_amp:", "s_memrealtime s[84:85]", "s_waitcnt lgkmcnt(0)", f"s_sub_u32 {s(sT1)}, s84, {s(sTS)}", f"s_cmp_lt_u32 {s(sT1)}, {s(sT0)}", "s_cbranch_scc1 L_amp")
    if diag:
        A("s_waitcnt lgkmcnt(0)")
        A(f"s_lshl_b32 {s(sT0)}, s2, 3", f"s_add_u32 {s(sT0)}, {s(sT0)}, {s(sW)}", f"s_mul_i32 {s(sT0)}, {s(sT0)}, {8*NTS}",
          f"s_add_u32 {s(sT0)}, {s(sT0)}, {TSOFF}", f"s_add_u32 {s(sM0)}, {s(P_WS)}, {s(sT0)}", f"s_addc_u32 {s(sM0+1)}, {s(P_WS+1)}, 0",
          "v_mov_b32 v2, 0", "s_mov_b64 exec, 1")
        for k in range(NTS):
            A(f"v_mov_b32 v4, {s(sTS+k)}", f"v_mov_b32 v5, 0", f"global_store_dwordx2 v2, v[4:5], {s(sM0,2)} offset:{8*k}", "s_nop 1")
    A("L_end:", "s_endpgm", "L_codeend:")
    body, nn = A.fix()
    out = [HEADER.rstrip(), f"; @launch grid=(256,1,1) block=(512,1,1) lds={LDS_TOTAL}"]
    if diag: out.append(f"; tsinfo 2048 {NTS}")
    out += ['.amdgcn_target "amdgcn-amd-amdhsa--gfx950"', ".text", f".globl {NAME}_kernel", ".p2align 8", f".type {NAME}_kernel,@function"]
    out += [("" if l.endswith(":") else "    ") + l for l in body]
    out += ['.section .rodata,"a"', ".p2align 6", f".amdhsa_kernel {NAME}_kernel", "  .amdhsa_next_free_vgpr 256", "  .amdhsa_next_free_sgpr 102",
            "  .amdhsa_accum_offset 256", "  .amdhsa_group_segment_fixed_size 0", "  .amdhsa_kernarg_size 112", "  .amdhsa_user_sgpr_count 2",
            "  .amdhsa_user_sgpr_kernarg_segment_ptr 1", "  .amdhsa_system_sgpr_workgroup_id_x 1", ".end_amdhsa_kernel"]
    return "\n".join(out) + "\n"

if __name__ == "__main__":
    kw = {}
    outf = sys.argv[1]
    for a in sys.argv[2:]:
        k, x = a.split("=")
        try: x = eval(x)
        except Exception: pass
        kw[k] = x
    open(outf, "w").write(gen(**kw))
```
